```python
import torch

def _softmax(x, axis=-1):
    return torch.softmax(x, dim=axis)
def _gelu(x):
    return torch.nn.functional.gelu(x, approximate="tanh")
def _silu(x):
    return torch.nn.functional.silu(x)
def _sigmoid(x):
    return torch.sigmoid(x)
def _layernorm(x, axis=-1, eps=1e-5):
    m = x.mean(dim=axis, keepdim=True)
    v = x.var(dim=axis, keepdim=True, unbiased=False)
    return (x - m) / torch.sqrt(v + eps)
def _scatter_add(tgt, idx, src, axis=0):
    return tgt.clone().index_add_(axis, idx, src)
def _segment_sum(src, seg, n):
    out = torch.zeros((n,) + src.shape[1:], dtype=src.dtype)
    return out.index_add_(0, seg, src)
def _pad(x, pw):
    flat = tuple(v for pair in reversed(pw) for v in pair)
    return torch.nn.functional.pad(x, flat)

kernel_name = 'sequential_preLN__spectral_gfnet__mixer_s_mlp__prompt'

def setup_inputs():

    _w = (lambda a: (lambda t: t.to(torch.bfloat16) if t.is_floating_point() else t)(torch.as_tensor(a)))
    def _A_setup():
        B, S, D = 1, 2048, 1024
        Df = D // 2 + 1
        return {
            "x": _w((lambda *s: torch.randn(*s, dtype=torch.bfloat16) * 0.05)(B, S, D)),
            "w_r": _w((lambda *s: torch.randn(*s, dtype=torch.bfloat16) * 0.4)(S, Df) * 0.02),
            "w_i": _w((lambda *s: torch.randn(*s, dtype=torch.bfloat16) * 0.4)(S, Df) * 0.02),
        }
    _A_in = _A_setup()

    def _B_setup():
        B, S, D, F = 1, 2048, 1024, 3584
        return {
            "x":  _w((lambda *s: torch.randn(*s, dtype=torch.bfloat16) * 0.05)(B, S, D)),
            "w1": _w((lambda *s: torch.randn(*s, dtype=torch.bfloat16) * 0.8)(D, D) * (D ** -0.5)),
            "w2": _w((lambda *s: torch.randn(*s, dtype=torch.bfloat16) * 0.8)(D, D) * (D ** -0.5)),
            "w3": _w((lambda *s: torch.randn(*s, dtype=torch.bfloat16) * 0.8)(D, F) * (D ** -0.5)),
            "w4": _w((lambda *s: torch.randn(*s, dtype=torch.bfloat16) * 0.8)(F, D) * (F ** -0.5)),
        }
    _B_in = _B_setup()

    return {
        "A_x": _A_in["x"],
        "A_w_r": _A_in["w_r"],
        "A_w_i": _A_in["w_i"],
        "B_x": _B_in["x"],
        "B_w1": _B_in["w1"],
        "B_w2": _B_in["w2"],
        "B_w3": _B_in["w3"],
        "B_w4": _B_in["w4"],
    }

def reference(A_x, A_w_r, A_w_i, B_x, B_w1, B_w2, B_w3, B_w4):
    def _A_ref(x, w_r, w_i):
        B, S, D = x.shape
        X = (lambda x, axes=(-2,-1): torch.fft.rfft2(x.float(), dim=axes))(x, axes=(-2, -1))
        W = w_r + 1j * w_i
        X = X * W
        y = (lambda x, s, axes=(-2,-1): torch.fft.irfft2(x, s=s, dim=axes).to(torch.bfloat16))(X, (S, D), axes=(-2, -1))
        return y

    def _B_ref(x, w1, w2, w3, w4):
        B, S, D = x.shape
        h = _gelu(_layernorm(x, axis=-1) @ w1)
        c = D // 4
        g0 = _pad(h[:, :, 0*c:1*c], ((0, 0), (1, 0), (0, 0)))[:, :S, :]
        g1 = _pad(h[:, :, 1*c:2*c], ((0, 0), (0, 1), (0, 0)))[:, 1:, :]
        g2 = _pad(h[:, :, 2*c:3*c], ((0, 0), (2, 0), (0, 0)))[:, :S, :]
        g3 = _pad(h[:, :, 3*c:   ], ((0, 0), (0, 2), (0, 0)))[:, 2:, :]
        hs = torch.concatenate([g0, g1, g2, g3], axis=-1) @ w2
        x1 = x + hs
        h2 = _gelu(_layernorm(x1, axis=-1) @ w3) @ w4
        return x1 + h2

    x = A_x
    h = x + _A_ref(_layernorm(x, axis=-1), A_w_r, A_w_i)
    h2 = h + _B_ref(_layernorm(h, axis=-1), B_w1, B_w2, B_w3, B_w4)
    return h2
```

```python
import re

def vr(n, c=1, k="v"):
    return f"{k}{n}" if c == 1 else f"{k}[{n}:{n+c-1}]"
def ar(n, c=1): return vr(n, c, "a")
def sr(n, c=1): return vr(n, c, "s")

class R:
    def __init__(self, kind, base, n): self.k, self.b, self.n = kind, base, n
    def __getitem__(self, i):
        if isinstance(i, slice):
            st = i.start or 0; en = self.n if i.stop is None else i.stop
            assert 0 <= st < en <= self.n, (st, en, self.n)
            return R(self.k, self.b+st, en-st)
        assert 0 <= i < self.n, (i, self.n)
        return R(self.k, self.b+i, 1)
    def sub(self, st, n): return self[st:st+n]
    def __str__(self): return vr(self.b, self.n, self.k)
    __repr__ = __str__
    def __format__(self, spec): return str(self)
    def __len__(self): return self.n

class Alloc:
    def __init__(self, kind, start, limit):
        self.k, self.p, self.limit, self.hi = kind, start, limit, start
    def __call__(self, n=1, align=None):
        if align is None: align = 4 if n >= 4 else (2 if n >= 2 else 1)
        if self.k == "s" and n >= 4: align = max(align, 4)
        self.p = (self.p + align - 1)//align*align
        r = R(self.k, self.p, n); self.p += n
        assert self.p <= self.limit, f"out of {self.k} regs: {self.p}"
        self.hi = max(self.hi, self.p)
        return r
    def mark(self): return self.p
    def reset(self, m): self.p = m

_REG = re.compile(r"^(-|\|)?(?:abs\(|neg\()?([vas])(?:(\d+)|\[(\d+):(\d+)\])\)?\|?$")
def regs_of(op):
    op = op.strip()
    m = _REG.match(op)
    if m:
        k = m.group(2)
        if m.group(3) is not None: return {(k, int(m.group(3)))}
        return {(k, i) for i in range(int(m.group(4)), int(m.group(5))+1)}
    if op in ("vcc",): return {("s", "vcc_lo"), ("s", "vcc_hi")}
    if op in ("vcc_lo", "vcc_hi", "m0", "exec_lo", "exec_hi"): return {("s", op)}
    if op == "exec": return {("s", "exec_lo"), ("s", "exec_hi")}
    return set()

TRANS = ("v_exp_f32", "v_log_f32", "v_rcp_f32", "v_rsq_f32", "v_sqrt_f32", "v_sin_f32", "v_cos_f32", "v_rcp_iflag_f32")
class I:
    __slots__ = ("text", "mn", "ops", "mods", "kind", "dst", "src", "A", "B", "C", "passes", "label", "target",
                 "trans", "dpp", "perm", "rdlane", "dot", "lds_dma", "wide_store", "store_data", "nop", "cond")
    def __init__(self, text):
        self.text = text
        t = text.split(";")[0].strip()
        self.label = None; self.target = None; self.kind = None
        self.dst = set(); self.src = set(); self.A = self.B = self.C = set(); self.passes = 0
        self.trans = self.dpp = self.perm = self.rdlane = self.dot = self.lds_dma = self.wide_store = False
        self.store_data = set(); self.nop = 1; self.cond = False
        self.mn = ""; self.ops = []; self.mods = ""
        if not t or t.startswith("."):
            self.kind = "dir"; self.nop = 0; return
        if t.endswith(":"):
            self.kind = "label"; self.label = t[:-1]; self.nop = 0; return
        p = t.split(None, 1)
        mn = self.mn = p[0]
        rest = p[1] if len(p) > 1 else ""
        ops, depth, cur = [], 0, ""
        for ch in rest:
            if ch in "[(": depth += 1
            if ch in "])": depth -= 1
            if ch == "," and depth == 0: ops.append(cur.strip()); cur = ""
            else: cur += ch
        if cur.strip(): ops.append(cur.strip())
        if ops:
            last = ops[-1].split(None, 1)
            ops[-1] = last[0]
            self.mods = last[1] if len(last) > 1 else ""
        self.ops = ops
        rs = [regs_of(o) for o in ops]
        allsrc = lambda lst: set().union(*lst) if lst else set()
        if mn.startswith("v_mfma"):
            self.kind = "mfma"; self.dst = rs[0]; self.A, self.B, self.C = rs[1], rs[2], rs[3]
            self.src = rs[1] | rs[2] | rs[3]
            self.passes = {"16x16x32": 4, "32x32x16": 8}[mn.split("_")[3]]
        elif mn.startswith("v_"):
            self.kind = "valu"
            base = mn.replace("_e32", "").replace("_e64", "").replace("_dpp", "").replace("_sdwa", "")
            self.trans = base in TRANS
            self.dpp = mn.endswith("_dpp") or "row_" in self.mods or "quad_perm" in self.mods
            self.perm = base.startswith("v_permlane")
            self.rdlane = base in ("v_readlane_b32", "v_readfirstlane_b32")
            self.dot = base.startswith("v_dot")
            if self.perm or base == "v_swap_b32":
                self.dst = rs[0] | rs[1]; self.src = rs[0] | rs[1]
            elif base in ("v_add_co_u32", "v_sub_co_u32", "v_addc_co_u32", "v_subb_co_u32"):
                self.dst = rs[0] | rs[1]; self.src = allsrc(rs[2:])
            else:
                self.dst = rs[0]; self.src = allsrc(rs[1:])
                if base in ("v_fmac_f32", "v_dot2c_f32_bf16", "v_writelane_b32") or self.dpp: self.src |= rs[0]
        elif mn.startswith("buffer_") or mn.startswith("global_"):
            self.kind = "vmem"
            lds = " lds" in " " + self.mods or "_lds_" in mn
            if mn in ("buffer_wbl2", "buffer_inv"): pass
            elif "load" in mn and not lds:
                self.dst = rs[0]; self.src = allsrc(rs[1:])
            elif "load" in mn:
                self.lds_dma = True; self.src = allsrc(rs) | {("s", "m0")}
            elif "atomic" in mn:
                self.src = allsrc(rs)
                if "sc0" in self.mods: self.dst = rs[0]
            else:
                self.src = allsrc(rs)
                self.store_data = rs[0] if mn.startswith("buffer_") else rs[1]
                self.wide_store = mn.endswith("x4") or mn.endswith("x3")
        elif mn.startswith("ds_"):
            self.kind = "ds"
            if "read" in mn or "permute" in mn or "swizzle" in mn:
                self.dst = rs[0]; self.src = allsrc(rs[1:])
            else: self.src = allsrc(rs)
        elif mn.startswith("s_"):
            self.kind = "salu"
            if mn == "s_nop": self.nop = int(ops[0], 0) + 1
            elif mn == "s_branch" or mn.startswith("s_cbranch"):
                self.target = ops[0]; self.cond = mn != "s_branch"
            elif mn.startswith("s_cmp") or mn.startswith("s_bitcmp") or mn in ("s_waitcnt", "s_barrier", "s_endpgm", "s_setprio", "s_sleep"):
                self.src = allsrc(rs)
            elif mn.startswith("s_load") or mn.startswith("s_buffer_load") or mn.startswith("s_memtime") or mn.startswith("s_memrealtime"):
                self.kind = "smem"; self.dst = rs[0]; self.src = allsrc(rs[1:])
            else:
                self.dst = rs[0]; self.src = allsrc(rs[1:])
                if "saveexec" in mn: self.dst = self.dst | regs_of("exec")
        else:
            raise ValueError("unknown instruction: " + text)

def _isv(rs): return {r for r in rs if r[0] in "va"}
def _iss(rs): return {r for r in rs if r[0] == "s"}

def need(p, c):
    n = 0
    if p.kind == "valu":
        wv = _isv(p.dst); ws = _iss(p.dst)
        if c.kind == "mfma" and wv & c.src: n = max(n, 2)
        if c.kind == "valu":
            if p.trans and not c.trans and wv & c.src: n = max(n, 1)
            if p.trans and c.trans and wv & c.src: n = max(n, 1)
            if (c.dpp or c.perm) and wv & c.src: n = max(n, 2)
            if c.rdlane and wv & c.src: n = max(n, 1)
            if ws & c.src: n = max(n, 4 if c.rdlane or c.mn.startswith("v_writelane") else 2)
            if p.dot and wv & (c.src | c.dst):
                same = p.mn == c.mn and (wv & c.dst) and not (wv & (c.src - c.dst))
                if not same: n = max(n, 3)
            if "sdwa" in p.mn and "dst_sel:DWORD" not in p.mods and wv & (c.src | c.dst): n = max(n, 1)
        if c.kind in ("vmem", "ds"):
            if ws & c.src: n = max(n, 5)
            if p.dot and wv & c.src: n = max(n, 3)
            if p.trans and wv & c.src: n = max(n, 1)
        if c.kind in ("salu", "smem") and ws & c.src: n = max(n, 1)
        if c.kind == "mfma" and p.dot and wv & c.src: n = max(n, 3)
    elif p.kind == "mfma":
        big = p.passes == 8
        if c.kind == "mfma":
            if p.dst & (c.A | c.B): n = max(n, 12 if big else 8)
            if p.dst & c.C and not (p.dst == c.C and p.passes == c.passes): n = max(n, 10 if big else 6)
            if p.dst & c.dst and not (p.dst & c.C) : n = max(n, 12 if big else 8)
        elif c.kind in ("valu", "vmem", "ds"):
            if p.dst & (c.src | c.dst): n = max(n, 12 if big else 8)
            if c.kind == "valu" and p.C & c.dst: n = max(n, 7 if big else 3)
            if c.kind != "valu" and p.C & c.dst: n = max(n, 7 if big else 3)
    elif p.kind == "salu":
        if ("s", "m0") in p.dst and c.lds_dma: n = max(n, 1)
    elif p.kind == "vmem":
        if p.wide_store and p.store_data & c.dst: n = max(n, 2)
    return n

MAXLOOK = 14
def fix_hazards(lines):
    ins = [I(l) for l in lines]
    total = 0
    while True:
        changed = False
        i = 0
        def mkbr():
            br = {}
            for k, x in enumerate(ins):
                if x.target: br.setdefault(x.target, []).append(x)
            return br
        br = mkbr()
        pos = {id(x): k for k, x in enumerate(ins)}
        def preds(i):
            out = []
            j = i - 1
            while j >= 0:
                x = ins[j]
                if x.kind == "label":
                    out += [pos[id(b)] for b in br.get(x.label, [])]
                    j -= 1; continue
                if x.kind == "dir": j -= 1; continue
                if x.mn in ("s_branch", "s_endpgm"): break
                out.append(j); break
            return out
        while i < len(ins):
            c = ins[i]
            if c.kind in ("dir", "label") or c.mn == "s_nop" or c.kind == "salu" and not c.src:
                i += 1; continue
            worst = 0
            stack = [(p, 0) for p in preds(i)]
            seen = {}
            while stack:
                j, d = stack.pop()
                if d >= MAXLOOK or seen.get(j, 99) <= d: continue
                seen[j] = d
                p = ins[j]
                r = need(p, c) - d
                if r > worst: worst = r
                for q in preds(j): stack.append((q, d + p.nop))
            if worst > 0:
                ins.insert(i, I(f"s_nop {worst-1}"))
                total += worst
                changed = True
                pos = {id(x): k for k, x in enumerate(ins)}
                i += 1
            i += 1
        if not changed: break
    return [x.text for x in ins], total

class Asm:
    def __init__(self): self.l = []
    def __call__(self, *s):
        for x in s:
            for y in str(x).split("\n"):
                y = y.strip()
                if y: self.l.append(y)
    def label(self, n): self.l.append(n + ":")

def kernel_text(name, body_lines, vgpr, agpr, sgpr):
    lines, nn = fix_hazards(body_lines)
    acc = max(4, (vgpr + 3)//4*4)
    nfv = acc + agpr if agpr else vgpr
    assert vgpr <= 256 and agpr <= 256 and sgpr <= 102
    code = f".globl {name}\n.p2align 8\n.type {name},@function\n{name}:\n" + "\n".join(l if l.endswith(":") else "  " + l for l in lines) + f"\n.L{name}_end:\n.size {name}, .L{name}_end - {name}\n"
    desc = f""".p2align 6
.amdhsa_kernel {name}
  .amdhsa_next_free_vgpr {nfv}
  .amdhsa_next_free_sgpr {sgpr}
  .amdhsa_accum_offset {acc}
  .amdhsa_group_segment_fixed_size 0
  .amdhsa_kernarg_size 88
  .amdhsa_user_sgpr_count 2
  .amdhsa_user_sgpr_kernarg_segment_ptr 1
  .amdhsa_system_sgpr_workgroup_id_x 1
  .amdhsa_float_denorm_mode_32 3
.end_amdhsa_kernel
"""
    return code, desc, nn, len(lines)
```

```python
from asmlib import *
import tables as T
ARG = dict(x=0, wr=8, wi=16, bx=24, w1=32, w2=40, w3=48, w4=56, out=64, dbg=72, ws=80)
MB = 1 << 20
WS = dict(Z1=0x0000000, Z2=0x0400000, WT=0x0800000, XB=0x0D00000, H=0x1100000, H1=0x1500000, X1=0x1900000,
          G=0x1D00000, ST2=0x2B00000, ST3=0x2B10000, CSP=0x2B60000, CS=0x2BA0000)
WSZ = dict(Z1=4*MB, Z2=4*MB, WT=515*8192, XB=4*MB, H=4*MB, H1=4*MB, X1=4*MB, G=2048*3584*2,
           ST2=2048*8, ST3=4*2048*32, CSP=8*4608*4, CS=4608*4)
ASZ = dict(x=4*MB, wr=2048*513*2, wi=2048*513*2, w1=2*MB, w2=2*MB, w3=1024*3584*2, w4=1024*3584*2, out=4*MB)
TBL = "fft_tables"
OOB = 0x40000000

def srd(a, d, ptr, size, off=0):
    if off:
        a(f"s_add_u32 {d[0]}, {ptr[0]}, {hex(off)}", f"s_addc_u32 {d[1]}, {ptr[1]}, 0")
    else:
        a(f"s_mov_b32 {d[0]}, {ptr[0]}", f"s_mov_b32 {d[1]}, {ptr[1]}")
    a(f"s_mov_b32 {d[2]}, {hex(size)}", f"s_mov_b32 {d[3]}, 0x20000")

def ws_srd(a, d, wsptr, name): srd(a, d, wsptr, WSZ[name], WS[name])

def load_arg(a, d, name): a(f"s_load_dwordx2 {d}, s[0:1], {ARG[name]}")

def table_srd(a, d, uniq):
    a(f"s_getpc_b64 {d[0:2]}")
    a.label(f".Lpc_{uniq}")
    a(f"s_add_u32 {d[0]}, {d[0]}, {TBL}-.Lpc_{uniq}", f"s_addc_u32 {d[1]}, {d[1]}, 0",
      f"s_mov_b32 {d[2]}, {hex(T.TABLE_BYTES)}", f"s_mov_b32 {d[3]}, 0x20000")

def code_prefetch(a, stmp2, vtmp, vdst, name, nbytes):
    a(f"s_getpc_b64 {stmp2}")
    a.label(f".Lpf_{name}")
    a(f"v_and_b32 {vtmp}, 63, v0", f"v_lshlrev_b32 {vtmp}, 7, {vtmp}")
    n = 0
    while n < nbytes:
        if n: a(f"v_add_u32 {vtmp}, 0x2000, {vtmp}")
        a(f"v_min_u32 {vdst}, {nbytes - 128}, {vtmp}", f"global_load_dword {vdst}, {vdst}, {stmp2}")
        n += 8192

def pk(op, d, *srcs, sel=None, neg=None):
    n = len(srcs)
    sel = sel or [None]*n; neg = neg or [0]*n
    s = f"v_pk_{op}_f32 {d}, " + ", ".join(str(x) for x in srcs)
    if any(x is not None for x in sel):
        s += " op_sel:[" + ",".join("1" if x == 1 else "0" for x in sel) + "]"
        s += " op_sel_hi:[" + ",".join("0" if x == 0 else "1" for x in sel) + "]"
    if any(neg):
        g = "[" + ",".join(str(int(bool(x))) for x in neg) + "]"
        s += f" neg_lo:{g} neg_hi:{g}"
    return s

def mfma(d, A, B, C=None):
    return f"v_mfma_f32_16x16x32_bf16 {d}, {A}, {B}, {C if C is not None else 0}"

def bfround(a, d, s):
    a(f"v_cvt_pk_bf16_f32 {d}, {s}, {s}", f"v_and_b32 {d}, 0xffff0000, {d}")

def row_stats_reduce(a, sumA, sumB, sqA, sqB, Zs, Zq):
    a(f"v_permlane32_swap_b32 {sumA}, {sumB}", f"v_permlane32_swap_b32 {sqA}, {sqB}",
      f"v_add_f32 {sumA}, {sumA}, {sumB}", f"v_add_f32 {sqA}, {sqA}, {sqB}",
      f"v_permlane16_swap_b32 {sumA}, {sqA}", f"v_add_f32 {Zs}, {sumA}, {sqA}")
    for n in (8, 4, 2, 1):
        a(f"v_add_f32_dpp {Zs}, {Zs}, {Zs} row_ror:{n} row_mask:0xf bank_mask:0xf")
    a(f"v_mov_b32 {Zq}, {Zs}", f"v_permlane16_swap_b32 {Zs}, {Zq}")

def ln_from_sums(a, Zs, Zq, m, sd, tmp, n=1024, rstd=None):
    a(f"v_mul_f32 {Zs}, {1.0/n!r}, {Zs}" if False else f"v_mul_f32 {Zs}, {hex(f2u(1.0/n))}, {Zs}",
      f"v_mul_f32 {Zq}, {hex(f2u(1.0/n))}, {Zq}",
      f"v_fma_f32 {tmp}, -{Zs}, {Zs}, {Zq}",
      f"v_max_f32 {tmp}, 0, {tmp}")
    bfround(a, m, Zs)
    bfround(a, tmp, tmp)
    a(f"v_add_f32 {tmp}, {hex(f2u(1e-5))}, {tmp}")
    bfround(a, tmp, tmp)
    a(f"v_sqrt_f32 {tmp}, {tmp}")
    bfround(a, sd, tmp)
    if rstd is not None: a(f"v_rcp_f32 {rstd}, {sd}")

import struct
def f2u(x): return struct.unpack("<I", struct.pack("<f", x))[0]

def bcast2(a, pair, src=None):
    if src is not None: a(f"v_mov_b32 {pair[0]}, {src}")
    a(f"v_mov_b32 {pair[1]}, {src if src is not None else pair[0]}", f"v_permlane32_swap_b32 {pair[0]}, {pair[1]}")

def cmul_tw(a, Yre, Yim, TR, TI, tmp, out, add=None, addsel=None):
    for h in range(2):
        s = slice(2*h, 2*h+2)
        if add is None:
            a(pk("mul", tmp[4*h:4*h+2], Yre[s], TR[s]), pk("mul", tmp[4*h+2:4*h+4], Yre[s], TI[s]))
        else:
            a(pk("fma", tmp[4*h:4*h+2], Yre[s], TR[s], add, sel=[None, None, addsel]),
              pk("fma", tmp[4*h+2:4*h+4], Yre[s], TI[s], add, sel=[None, None, addsel]))
    for h in range(2):
        s = slice(2*h, 2*h+2)
        a(pk("fma", tmp[4*h:4*h+2], Yim[s], TI[s], tmp[4*h:4*h+2], neg=[1, 0, 0]),
          pk("fma", tmp[4*h+2:4*h+4], Yim[s], TR[s], tmp[4*h+2:4*h+4]))
    for h in range(2):
        for e in range(2):
            a(f"v_cvt_pk_bf16_f32 {out[2*h+e]}, {tmp[4*h+e]}, {tmp[4*h+2+e]}")
```

```python
import numpy as np
def bf16(x):
    u = np.asarray(x, dtype=np.float64).astype(np.float32).view(np.uint32).astype(np.uint64)
    return ((u + 0x7fff + ((u >> 16) & 1)) >> 16).astype(np.uint32) & 0xffff
def f32(x): return np.asarray(x, dtype=np.float64).astype(np.float32).view(np.uint32)
L = np.arange(64); I_ = (L & 15)[:, None]; Q_ = (L >> 4)[:, None]; J_ = np.arange(4)[None, :]
def cs(num, den):
    num = np.asarray(num) % den
    c = np.cos(2*np.pi*num/den); s = np.sin(2*np.pi*num/den)
    c[np.abs(c) < 1e-12] = 0; s[np.abs(s) < 1e-12] = 0
    return c, s
def dftblk(out0, in0, den, ri):
    c, s = cs((out0 + I_) * (in0 + 4*Q_ + J_), den)
    lo, hi = (c, s) if ri == 0 else (-s, c)
    return bf16(lo + 0.0) | (bf16(hi + 0.0) << 16)
def tw(lane0, reg0, den, scale=1.0):
    c, s = cs((lane0 + I_) * (reg0 + 4*Q_ + J_), den)
    return f32(c*scale), f32(-s*scale + 0.0)
blocks = []
def add(b):
    blocks.append(np.ascontiguousarray(b, dtype=np.uint32).reshape(64, 4)); return len(blocks) - 1
T16 = len(blocks)
for ri in range(2): add(dftblk(0, 0, 16, ri))
T32 = len(blocks)
for hb in range(2):
    for ri in range(2):
        for ks in range(2): add(dftblk(16*hb, 16*ks, 32, ri))
def addtw(lane0s, reg0s, den, scale=1.0):
    t = [tw(a, b, den, scale) for a, b in zip(lane0s, reg0s)]
    for x in t: add(x[0])
    for x in t: add(x[1])
TW1 = len(blocks); addtw([0, 0], [0, 16], 512)
TW3 = len(blocks); addtw([0, 16], [0, 0], 512, 2.0**-21)
K2W = len(blocks)
for w in range(4):
    for ks in range(4):
        for ri in range(2): add(dftblk(16*w, 16*ks, 64, ri))
    addtw([16*w, 16*w], [0, 16], 2048)
    addtw([0, 16], [16*w, 16*w], 2048)
TABLE = np.concatenate(blocks).reshape(-1)
TABLE_BYTES = TABLE.size*4
def table_text(name):
    out = [f".p2align 8", f".type {name},@object", f"{name}:"]
    for i in range(0, TABLE.size, 8):
        out.append(".long " + ",".join(hex(int(v)) for v in TABLE[i:i+8]))
    out.append(f".size {name}, {TABLE_BYTES}")
    return "\n".join(out) + "\n"
if __name__ == "__main__":
    print(len(blocks), TABLE_BYTES, len(table_text("t")))
```

```python
import sys, importlib
sys.path.insert(0, "gen")
from common import *
HEADER = open("sequential_preLN__spectral_gfnet__mixer_s_mlp__prompt.s.ref").read().split("; Override launch geometry")[0]
def make(mods, path):
    codes, descs, launches = [], [], []
    for m in mods:
        lines, v, ag, s = m.build()
        c, d, nn, n = kernel_text(m.NAME, lines, v, ag, s)
        print(f"{m.NAME}: {n} lines, vgpr {v} agpr {ag} sgpr {s}, nop states {nn}", file=sys.stderr)
        codes.append(c); descs.append(d)
        launches.append(f"; @launch kernel={m.NAME} grid=({m.NWG},1,1) block=(256,1,1) lds={m.LDS}")
    txt = HEADER + "\n".join(launches) + '\n.amdgcn_target "amdgcn-amd-amdhsa--gfx950"\n.text\n' + "".join(codes) + T.table_text(TBL) + '.section .rodata,"a"\n' + "".join(descs)
    open(path, "w").write(txt)
    return txt
if __name__ == "__main__":
    names = sys.argv[2:]
    mods = []
    for n in names:
        if ":" in n:
            mod, cls = n.split(":"); mods.append(getattr(importlib.import_module(mod), cls))
        else: mods.append(importlib.import_module(n))
    make(mods, sys.argv[1])
```

```python
from common import *
import math
C0F = -2*math.log2(math.e)*math.sqrt(2/math.pi)
C1F = C0F*0.044715

def interleave(*streams):
    out = []
    n = max(len(s) for s in streams)
    for k in range(n):
        for s in streams:
            if k < len(s): out.append(s[k])
    return out

class Gemm:
    NWG = 256
    def __init__(self, name, kind):
        self.NAME, self.kind = name, kind
        k = kind
        self.NF = 14 if k == 3 else 4
        self.P = 512 if k == 3 else 128
        self.KS = 2 if k == 3 else 4
        self.NSLOT = {1: 8, 2: 8, 3: 16, 4: 28}[k]
        self.NS = {1: 8, 2: 8, 3: 4, 4: 7}[k]
        self.LA = {1: 5, 2: 5, 3: 3, 4: 5}[k]
        self.pitch = 7168 if k == 3 else 2048
        self.ablk = 112*1024 if k == 4 else 32768
        self.slotb = self.KS*32*self.P
        self.ring = self.NS*self.slotb
        self.LDS = self.ring + (1024 if k == 3 else 0)
        self.wname = {1: "w1", 2: "w2", 3: "w3", 4: "w4"}[k]
        self.aname = {1: "XB", 2: "H1", 3: "X1", 4: "G"}[k]

    def build(g):
        a = Asm(); S = Alloc("s", 4, 100); V = Alloc("v", 1, 256); A = Alloc("a", 0, 256)
        NAME, NF, P, KS, NS, LA, NSLOT, k = g.NAME, g.NF, g.P, g.KS, g.NS, g.LA, g.NSLOT, g.kind
        p_ws, p_w, p_o = S(2), S(2), S(2)
        srdA, srdW, srdR, srdR2, srdO = S(4), S(4), S(4), S(4), S(4)
        sw, stt, sft, stb, sA, sW, sM, sloop, st0, st1, st2, st3 = [S() for _ in range(12)]
        spf = S(2)
        vl, vi, vq, vt0, vt1, vpf, vtab = [V() for _ in range(7)]
        nact = 8 if k == 2 else 2
        vact = V(nact, align=1); vdma = V(4, align=1)
        nad = 8 if NF == 14 else 4
        vtr = [V(nad, align=1), V(nad, align=1)]
        acc = V(2*NF*4); ACT = A(NS*KS*2*4)
        wf = [V(NF*4), A(NF*4) if k == 3 else V(NF*4)]
        vm = []
        def VM(txt, tag): vm.append(tag); return txt
        def wait_vm(tag):
            idx = max(i for i, t in enumerate(vm) if t == tag)
            n = len(vm) - 1 - idx
            assert n <= 63, n
            return f"s_waitcnt vmcnt({n})"
        code_prefetch(a, spf, vt0, vpf, NAME, {1: 8192, 2: 8192, 3: 16384, 4: 16384}[k]); vm += ["pf"]*(2 if k >= 3 else 1)
        a(f"s_cmp_ge_u32 s2, 256", f"s_cbranch_scc1 .L{NAME}_done")
        load_arg(a, p_ws, "ws"); load_arg(a, p_w, g.wname)
        if k == 4: load_arg(a, p_o, "out")
        a(f"v_lshrrev_b32 {vt1}, 6, v0", f"v_and_b32 {vl}, 63, v0", f"v_readfirstlane_b32 {sw}, {vt1}",
          f"v_and_b32 {vi}, 15, v0", f"v_lshrrev_b32 {vq}, 4, {vl}", f"v_lshlrev_b32 {vtab}, 4, {vl}")
        a(f"s_and_b32 {st0}, s2, 7", f"s_lshr_b32 {st1}, s2, 3")
        if k == 3:
            a(f"s_lshr_b32 {stt}, {st0}, 2", f"s_lshl_b32 {stt}, {stt}, 3", f"s_lshr_b32 {st2}, {st1}, 2", f"s_add_u32 {stt}, {stt}, {st2}",
              f"s_and_b32 {sft}, {st0}, 3", f"s_lshl_b32 {sft}, {sft}, 2", f"s_and_b32 {st2}, {st1}, 3", f"s_add_u32 {sft}, {sft}, {st2}")
        else:
            a(f"s_lshr_b32 {stt}, {st0}, 1", f"s_lshl_b32 {stt}, {stt}, 2", f"s_lshr_b32 {st2}, {st1}, 3", f"s_add_u32 {stt}, {stt}, {st2}",
              f"s_and_b32 {sft}, {st0}, 1", f"s_lshl_b32 {sft}, {sft}, 3", f"s_and_b32 {st2}, {st1}, 7", f"s_add_u32 {sft}, {sft}, {st2}")
        a(f"s_lshl_b32 {stb}, {stt}, 3", f"s_lshl_b32 {st2}, {sw}, 1", f"s_add_u32 {stb}, {stb}, {st2}")
        if k != 2:
            a(f"s_mul_i32 {st2}, {stb}, {g.ablk}", f"v_add_u32 {vact[0]}, {st2}, {vtab}", f"v_add_u32 {vact[1]}, {g.ablk}, {vact[0]}")
        else:
            a(f"s_lshl_b32 {st2}, {stb}, 4", f"v_add_u32 {vt0}, {st2}, {vi}", f"v_lshlrev_b32 {vpf}, 8, {vq}" if False else "s_nop 0")
            vq8, vtk = acc[0], acc[1]
            a(f"v_lshlrev_b32 {vq8}, 8, {vq}", f"s_movk_i32 {st3}, 2048")
            for grp, dl in enumerate((1, -1, 2, -2)):
                for tb in range(2):
                    d = vact[2*grp+tb]
                    a(f"v_add_u32 {vtk}, {16*tb - dl}, {vt0}", f"v_lshrrev_b32 {d}, 4, {vtk}", f"v_lshl_add_u32 {d}, {d}, 15, {vq8}",
                      f"v_and_b32 {vt1}, 15, {vtk}", f"v_lshl_add_u32 {d}, {vt1}, 4, {d}", f"v_cmp_gt_u32 vcc, {st3}, {vtk}",
                      f"v_mov_b32 {vt1}, {hex(OOB)}", f"v_cndmask_b32 {d}, {vt1}, {d}, vcc")
        if k == 3:
            a(f"s_and_b32 {st2}, {sft}, 1", f"s_mul_i32 {st3}, {sft}, 448", f"s_lshl_b32 {st0}, {st2}, 6", f"s_sub_u32 {st3}, {st3}, {st0}",
              f"s_mul_i32 {st0}, {sw}, {8*7168}", f"s_add_u32 {st3}, {st3}, {st0}",
              f"v_lshrrev_b32 {vt0}, 5, {vl}", f"s_movk_i32 {st0}, 7168")
            for n in range(4):
                a(f"v_add_u32 {vt1}, {2*n}, {vt0}", f"v_mul_u32_u24 {vdma[n]}, {st0}, {vt1}", f"v_lshlrev_b32 {vt1}, 1, {vt1}", f"v_xor_b32 {vt1}, {vt1}, {vl}",
                  f"v_and_b32 {vt1}, 31, {vt1}", f"v_lshl_add_u32 {vdma[n]}, {vt1}, 4, {vdma[n]}", f"v_add_u32 {vdma[n]}, {st3}, {vdma[n]}")
                if n: a(f"v_subrev_u32 {vdma[n]}, {1024*n}, {vdma[n]}")
        else:
            a(f"v_lshrrev_b32 {vt0}, 3, {vl}", f"v_lshlrev_b32 {vt1}, 1, {vq}", f"v_xor_b32 {vt1}, {vt1}, {vl}", f"v_and_b32 {vt1}, 7, {vt1}",
              f"v_lshlrev_b32 {vt1}, 4, {vt1}", f"v_lshl_add_u32 {vdma[0]}, {vt0}, 11, {vt1}",
              f"s_lshl_b32 {st3}, {sft}, 7", f"s_lshl_b32 {st0}, {sw}, 16", f"s_add_u32 {st3}, {st3}, {st0}", f"v_add_u32 {vdma[0]}, {st3}, {vdma[0]}")
            for n in range(1, 4): a(f"v_add_u32 {vdma[n]}, {15360*n}, {vdma[0]}")
        a(f"s_lshl_b32 {sM}, {sw}, 12", f"s_mov_b32 {sA}, 0", f"s_mov_b32 {sW}, 0")
        a("s_waitcnt lgkmcnt(0)")
        ws_srd(a, srdA, p_ws, g.aname); srd(a, srdW, p_w, ASZ[g.wname])
        if k == 1:
            PS = V(4); CC = V(4); CS = V(16)
            ws_srd(a, srdR, p_ws, "ST2"); ws_srd(a, srdR2, p_ws, "CS")
            a(f"v_lshlrev_b32 {vt0}, 3, {vi}", f"s_lshl_b32 {st0}, {stb}, 7")
            for tb in range(2): a(VM(f"buffer_load_dwordx2 {PS[2*tb:][:2]}, {vt0}, {srdR}, {st0} offen offset:{128*tb}", "st"))
        if k == 3:
            M = V(2); SD = V(2); C0 = V(2); C1 = V(2); SL = wf[0][0:16]
            ws_srd(a, srdR, p_ws, "ST3"); ws_srd(a, srdR2, p_ws, "CS")
            a(f"v_lshlrev_b32 {vt0}, 16, {vq}", f"v_lshl_add_u32 {vt0}, {vi}, 5, {vt0}", f"s_lshl_b32 {st0}, {stb}, 9")
            for tb in range(2):
                for x in range(2): a(VM(f"buffer_load_dwordx4 {SL[8*tb+4*x:][:4]}, {vt0}, {srdR}, {st0} offen offset:{512*tb+16*x}", "st"))
            a(f"s_mul_i32 {st1}, {sft}, 896", f"s_add_u32 {st1}, {st1}, 4096", f"s_mov_b32 m0, {g.ring}", "s_nop 0")
            a(VM(f"buffer_load_dwordx4 {vtab}, {srdR2}, {st1} offen lds", "cs"))
        def issue(n):
            o = []; pos = n % NS
            ng = KS if k == 3 else 1
            for gi in range(ng):
                o.append(f"s_add_u32 m0, {sM}, {pos*g.slotb + gi*16384}")
                for x in range(4):
                    o.append(VM(f"buffer_load_dwordx4 {vdma[x]}, {srdW}, {sW} offen offset:{1024*x} lds", ("slot", n)))
                    if x == 3: o.append(f"s_add_u32 {sW}, {sW}, {(32 if k == 3 else 128)*g.pitch}")
                    if x == 0 and False: pass
            for s in range(KS):
                for tb in range(2):
                    va = vact[2*(n//2)+tb] if k == 2 else vact[tb]
                    o.append(VM(f"buffer_load_dwordx4 {ACT[((pos*KS+s)*2+tb)*4:][:4]}, {va}, {srdA}, {sA} offen offset:{1024*s}", ("slot", n)))
            o.append(f"s_add_u32 {sA}, {sA}, {KS*1024}")
            o[0], o[1] = o[0], o[1]
            return o
        for n in range(LA): a(*issue(n))
        a(f"v_lshrrev_b32 {vt0}, 2, {vi}", f"v_lshl_add_u32 {vt0}, {vq}, 2, {vt0}")
        if k == 3:
            a(f"v_and_b32 {vt1}, 7, {vt0}", f"v_lshlrev_b32 {vt1}, 1, {vt1}", f"s_and_b32 {st2}, {sft}, 1", f"s_lshl_b32 {st2}, {st2}, 2")
        else:
            a(f"v_bfe_u32 {vt1}, {vt0}, 1, 2", f"v_lshlrev_b32 {vt1}, 1, {vt1}", f"s_mov_b32 {st2}, 0")
        a(f"v_lshlrev_b32 {vt0}, {int(math.log2(P))}, {vt0}", f"v_and_b32 {vpf}, 1, {vl}" if False else "s_nop 0")
        t2, t3 = acc[0], acc[1]
        a(f"v_and_b32 {t2}, 1, {vl}", f"v_lshl_add_u32 {vt0}, {t2}, 3, {vt0}", f"v_bfe_u32 {t2}, {vl}, 1, 1", f"v_add_u32 {t2}, {st2}, {t2}")
        for x in range(nad):
            a(f"v_add_u32 {t3}, {2*x}, {t2}", f"v_xor_b32 {t3}, {t3}, {vt1}", f"v_lshl_add_u32 {vtr[0][x]}, {t3}, 4, {vt0}",
              f"v_add_u32 {vtr[1][x]}, 0x10000, {vtr[0][x]}")
        if k == 1:
            a(wait_vm("st"))
            for tb in range(2):
                a(f"v_rcp_f32 {vt0}, {PS[2*tb+1]}", f"s_nop 0", f"v_mul_f32 {CC[2*tb]}, {hex(f2u(C0F))}, {vt0}", f"v_mul_f32 {vt1}, {vt0}, {vt0}",
                  f"v_mul_f32 {vt1}, {vt1}, {vt0}", f"v_mul_f32 {CC[2*tb+1]}, {hex(f2u(C1F))}, {vt1}")
            cm = lambda tb: (PS[2*tb:][:2], 0); cs_ = lambda tb: (PS[2*tb:][:2], 1); c0 = lambda tb: (CC[2*tb:][:2], 0); c1 = lambda tb: (CC[2*tb:][:2], 1)
        if k == 3:
            a(wait_vm("st"))
            for tb in range(2):
                x = SL[8*tb:][:8]
                a(pk("add", x[0:2], x[0:2], x[2:4]), pk("add", x[4:6], x[4:6], x[6:8]), pk("add", x[0:2], x[0:2], x[4:6]))
            sA_, qA, sB, qB = SL[0], SL[1], SL[8], SL[9]
            a(f"v_permlane32_swap_b32 {sA_}, {sB}", f"v_permlane32_swap_b32 {qA}, {qB}", f"v_add_f32 {sA_}, {sA_}, {sB}", f"v_add_f32 {qA}, {qA}, {qB}",
              f"v_permlane16_swap_b32 {sA_}, {qA}", f"v_add_f32 {sA_}, {sA_}, {qA}", f"v_mov_b32 {qA}, {sA_}", f"v_permlane16_swap_b32 {sA_}, {qA}")
            ln_from_sums(a, sA_, qA, M[0], SD[0], vt0, rstd=vt1)
            a("s_nop 0", f"v_mul_f32 {C0[0]}, {hex(f2u(C0F))}, {vt1}", f"v_mul_f32 {vt0}, {vt1}, {vt1}", f"v_mul_f32 {vt0}, {vt0}, {vt1}", f"v_mul_f32 {C1[0]}, {hex(f2u(C1F))}, {vt0}")
            for x in (M, SD, C0, C1): bcast2(a, x)
            cm = lambda tb: (M, tb); cs_ = lambda tb: (SD, tb); c0 = lambda tb: (C0, tb); c1 = lambda tb: (C1, tb)
        for r in range(len(acc)): a(f"v_mov_b32 {acc[r]}, 0")
        def reads(n, s):
            o = []; b = wf[(n*KS+s) % 2]
            for fb in range(NF):
                for h in range(2):
                    off = (n % NS)*g.slotb + (32*s + 16*h)*P + (fb >> 3)*256
                    o.append(f"ds_read_b64_tr_b16 {b[4*fb+2*h:][:2]}, {vtr[off >> 16][fb % nad]} offset:{off & 0xffff}")
            return o
        a(wait_vm(("slot", 0)), "s_barrier", *reads(0, 0))
        def tail_loads():
            o = []
            if k == 1:
                o += [f"v_lshlrev_b32 {vt1}, 4, {vq}", f"s_lshl_b32 {st1}, {sft}, 8"]
                for fb in range(4): o.append(VM(f"buffer_load_dwordx4 {CS[4*fb:][:4]}, {vt1}, {srdR2}, {st1} offen offset:{64*fb}", "cs"))
            if k == 2:
                o.append(f"s_lshl_b32 {st0}, {stb}, 15"); o.append(f"s_lshl_b32 {st1}, {sft}, 11"); o.append(f"s_add_u32 {st0}, {st0}, {st1}"); o.append(f"s_add_u32 {st1}, {st0}, 32768")
                for tb in range(2):
                    for c in range(2): o.append(VM(f"buffer_load_dwordx4 {RES[8*tb+4*c:][:4]}, {vtab}, {srdR}, {[st0, st1][tb]} offen offset:{1024*c}", "res"))
            if k == 4:
                o.append(f"s_lshl_b32 {st0}, {stb}, 15"); o.append(f"s_lshl_b32 {st1}, {sft}, 11"); o.append(f"s_add_u32 {st0}, {st0}, {st1}"); o.append(f"s_add_u32 {st1}, {st0}, 32768")
                for sd, rg in ((srdR, RES), (srdR2, RES2)):
                    for tb in range(2):
                        for c in range(2): o.append(VM(f"buffer_load_dwordx4 {rg[8*tb+4*c:][:4]}, {vtab}, {sd}, {[st0, st1][tb]} offen offset:{1024*c}", "res"))
            return o
        if k == 2:
            RES = V(16); ws_srd(a, srdR, p_ws, "XB"); ws_srd(a, srdR2, p_ws, "ST3"); ws_srd(a, srdO, p_ws, "X1")
        if k == 4:
            RES = V(16); RES2 = V(16); ws_srd(a, srdR, p_ws, "X1"); ws_srd(a, srdR2, p_ws, "H"); srd(a, srdO, p_o, ASZ["out"])
        if k == 1: ws_srd(a, srdO, p_ws, "H1")
        if k == 3: ws_srd(a, srdO, p_ws, "G")
        def phase(n):
            o = []
            vmops = issue(n + LA) if n + LA < NSLOT else (tail_loads() if n + LA == NSLOT else [])
            for s in range(KS):
                last = s == KS - 1
                o.append("s_waitcnt lgkmcnt(0)")
                if last and n + 1 < NSLOT:
                    o.append(wait_vm(("slot", n+1))); o.append("s_barrier")
                rd = reads(n, s+1) if not last else (reads(n+1, 0) if n + 1 < NSLOT else [])
                if not last:
                    take = -(-len(vmops) // (KS - 1 - s)); mine, vmops = vmops[:take], vmops[take:]
                else: mine = []
                b = wf[(n*KS+s) % 2]
                mf = [mfma(acc[(tb*NF+fb)*4:][:4], b[4*fb:][:4], ACT[(((n % NS)*KS+s)*2+tb)*4:][:4], acc[(tb*NF+fb)*4:][:4]) for fb in range(NF) for tb in range(2)]
                nm = len(mf)
                if NF == 14: rsl = [(2 if j % 2 == 0 else 1) if j < 19 else 0 for j in range(nm)]; rsl[18] = 1
                else: rsl = [2 if j < 4 else 0 for j in range(nm)]
                assert sum(rsl) >= len(rd)
                for j in range(nm):
                    o.append(mf[j])
                    for _ in range(rsl[j]):
                        if rd: o.append(rd.pop(0))
                    left = nm - j
                    tk = -(-len(mine) // left) if (NF == 4 or j >= 1) else 0
                    if NF == 14: tk = min(len(mine), 1 if (j % 2 == 1 or j >= 19) else 0) if j < nm - 1 else len(mine)
                    o += mine[:tk]; mine = mine[tk:]
                assert not rd and not mine
            return o
        nl = (NSLOT - LA) // NS
        if nl >= 2:
            texts = [phase(n) for n in range(nl*NS)]
            for n in range(NS, nl*NS): assert texts[n] == texts[n - NS], (n, [x for x in zip(texts[n], texts[n-NS]) if x[0] != x[1]][:3])
            a(f"s_mov_b32 {sloop}, {nl}")
            a.label(f".L{NAME}_loop")
            for n in range(NS): a(*texts[n])
            a(f"s_sub_u32 {sloop}, {sloop}, 1", f"s_cmp_lg_u32 {sloop}, 0", f"s_cbranch_scc1 .L{NAME}_loop")
            first = nl*NS
        else: first = 0
        for n in range(first, NSLOT): a(*phase(n))
        T_ = wf[0] if NF == 14 else V(48)
        if k in (1, 3):
            nch = NF // 2
            a(f"s_mul_i32 {st0}, {stb}, {112*1024 if k == 3 else 32768}", f"s_mul_i32 {st1}, {sft}, {nch*1024}", f"s_add_u32 {st0}, {st0}, {st1}")
            if k == 1: a(wait_vm("cs"))
            else: a(f"v_lshlrev_b32 {vt0}, 4, {vq}")
            def csread(c):
                return [f"ds_read_b128 {T_[32+8*(c % 2)+4*e:][:4]}, {vt0} offset:{64*(2*c+e)}" for e in range(2)]
            if k == 3:
                a(f"v_add_u32 {vt0}, {g.ring}, {vt0}", *csread(0))
            def gelu(tb, c, d, t, out):
                A_ = acc[(tb*NF+2*c)*4+2*d:][:2]; cs = CS[8*c+2*d:][:2] if k == 1 else T_[32+8*(c % 2)+2*d:][:2]
                x, y = t[0:2], t[2:4]
                (m, ms), (sd, ss), (k0, k0s), (k1, k1s) = cm(tb), cs_(tb), c0(tb), c1(tb)
                return [pk("fma", A_, cs, m, A_, sel=[None, ms, None], neg=[1, 0, 0]), pk("mul", x, A_, A_),
                        pk("fma", x, x, k1, k0, sel=[None, k1s, k0s]), pk("mul", x, A_, x),
                        f"v_exp_f32 {y[0]}, {x[0]}", f"v_exp_f32 {y[1]}, {x[1]}", pk("fma", y, y, sd, sd, sel=[None, ss, ss]),
                        f"v_rcp_f32 {x[0]}, {y[0]}", f"v_rcp_f32 {x[1]}, {y[1]}", pk("mul", A_, A_, x), f"v_cvt_pk_bf16_f32 {out}, {A_[0]}, {A_[1]}"]
            cnt = 0
            for c in range(nch):
                if k == 3:
                    a("s_waitcnt lgkmcnt(0)")
                    if c + 1 < nch: a(*csread(c+1))
                for tb in range(2):
                    out = T_[16+4*(cnt % 4):][:4]
                    a(*interleave(*[gelu(tb, c, d, T_[4*d:][:4], out[d]) for d in range(4)]))
                    off = 1024*c
                    if tb == 0 and c % 4 == 0:
                        if c: a(f"s_add_u32 {st0}, {st0}, 4096")
                        a(f"s_add_u32 {st1}, {st0}, {112*1024 if k == 3 else 32768}")
                    a(f"buffer_store_dwordx4 {out}, {vtab}, {srdO}, {[st0, st1][tb]} offen offset:{off % 4096}")
                    cnt += 1
        if k in (2, 4):
            a(wait_vm("res"))
            def unp(lo, hi, src): return [f"v_lshlrev_b32 {lo}, 16, {src}", f"v_and_b32 {hi}, 0xffff0000, {src}"]
            if k == 2:
                st = V(4); ones = st2
                a(f"s_mov_b32 {ones}, 0x3f803f80")
                for r in range(4): a(f"v_mov_b32 {st[r]}, 0")
            def epi(tb, c, d, t):
                A_ = acc[(tb*NF+2*c)*4+2*d:][:2]; r = RES[8*tb+4*c+d]; x = t[0:2]
                o = [f"v_cvt_pk_bf16_f32 {A_[0]}, {A_[0]}, {A_[1]}", *unp(x[0], x[1], r), f"v_and_b32 {A_[1]}, 0xffff0000, {A_[0]}", f"v_lshlrev_b32 {A_[0]}, 16, {A_[0]}",
                     pk("add", A_, A_, x), f"v_cvt_pk_bf16_f32 {r}, {A_[0]}, {A_[1]}"]
                if k == 4:
                    r2 = RES2[8*tb+4*c+d]
                    o += [*unp(x[0], x[1], r2), *unp(A_[0], A_[1], r), pk("add", A_, A_, x), f"v_cvt_pk_bf16_f32 {r}, {A_[0]}, {A_[1]}"]
                return o
            if k == 4:
                aw = V(4, align=1); ard, vo = V(), V()
                a(f"v_lshrrev_b32 {vt0}, 1, {vq}", f"v_xor_b32 {vt0}, {vt0}, {vi}", f"v_and_b32 {vt0}, 7, {vt0}", f"v_lshlrev_b32 {vt0}, 4, {vt0}",
                  f"v_lshl_add_u32 {vt0}, {vi}, 7, {vt0}", f"v_and_b32 {vt1}, 1, {vq}", f"v_lshl_add_u32 {vt0}, {vt1}, 3, {vt0}", f"v_add_u32 {aw[0]}, {sM}, {vt0}")
                for x in range(1, 4): a(f"v_xor_b32 {aw[x]}, {32*x}, {aw[0]}")
                a(f"v_lshrrev_b32 {vt0}, 3, {vl}", f"v_xor_b32 {vt1}, {vt0}, {vl}", f"v_and_b32 {vt1}, 7, {vt1}", f"v_lshlrev_b32 {vt1}, 4, {vt1}",
                  f"v_lshl_add_u32 {ard}, {vt0}, 7, {vt1}", f"v_add_u32 {ard}, {sM}, {ard}",
                  f"v_and_b32 {vt1}, 7, {vl}", f"v_lshlrev_b32 {vt1}, 4, {vt1}", f"v_lshl_add_u32 {vo}, {vt0}, 11, {vt1}",
                  f"s_lshl_b32 {st0}, {stb}, 15", f"s_lshl_b32 {st1}, {sft}, 7", f"s_add_u32 {st0}, {st0}, {st1}")
            for tb in range(2):
                for c in range(2):
                    a(*interleave(*[epi(tb, c, d, T_[2*d:][:2]) for d in range(4)]))
                    q4 = RES[8*tb+4*c:][:4]
                    if k == 2:
                        a(f"buffer_store_dwordx4 {q4}, {vtab}, {srdO}, {[st0, st1][tb]} offen offset:{1024*c}")
                    else:
                        for jh in range(2): a(f"ds_write_b64 {aw[2*c+jh]}, {q4[2*jh:][:2]} offset:{2048*tb}")
            if k == 2:
                for j in range(8):
                    for tb in range(2):
                        x = RES[8*tb+j]
                        a(f"v_dot2c_f32_bf16 {st[tb]}, {ones}, {x}", f"v_dot2c_f32_bf16 {st[2+tb]}, {x}, {x}")
                a(f"v_permlane32_swap_b32 {st[0]}, {st[1]}", f"v_permlane32_swap_b32 {st[2]}, {st[3]}", f"v_add_f32 {st[0]}, {st[0]}, {st[1]}", f"v_add_f32 {st[2]}, {st[2]}, {st[3]}",
                  f"v_permlane16_swap_b32 {st[0]}, {st[2]}", f"v_add_f32 {st[0]}, {st[0]}, {st[2]}")
                a(f"v_lshrrev_b32 {vt0}, 1, {vq}", f"v_lshl_add_u32 {vt0}, {vt0}, 4, {vi}", f"v_lshlrev_b32 {vt0}, 5, {vt0}", f"v_and_b32 {vt1}, 1, {vq}",
                  f"v_lshl_add_u32 {vt0}, {vt1}, 2, {vt0}", f"s_lshr_b32 {st0}, {sft}, 2", f"s_lshl_b32 {st0}, {st0}, 16", f"s_and_b32 {st1}, {sft}, 3", f"s_lshl_b32 {st1}, {st1}, 3",
                  f"s_add_u32 {st0}, {st0}, {st1}", f"s_lshl_b32 {st1}, {stb}, 9", f"s_add_u32 {st0}, {st0}, {st1}",
                  f"buffer_store_dword {st[0]}, {vt0}, {srdR2}, {st0} offen")
            else:
                a("s_waitcnt lgkmcnt(0)")
                for n in range(4): a(f"ds_read_b128 {T_[16+4*n:][:4]}, {ard} offset:{1024*n}")
                for n in range(4):
                    a(f"s_waitcnt lgkmcnt({3-n})", f"buffer_store_dwordx4 {T_[16+4*n:][:4]}, {vo}, {srdO}, {st0} offen")
                    if n < 3: a(f"s_add_u32 {st0}, {st0}, 16384")
        a.label(f".L{NAME}_done")
        a("s_endpgm")
        return a.l, V.hi, A.hi, S.hi

G1 = Gemm("gemm1_kernel", 1); G2 = Gemm("gemm2_kernel", 2); G3 = Gemm("gemm3_kernel", 3); G4 = Gemm("gemm4_kernel", 4)
```

```python
from common import *
NAME = "fft_rows_fwd_kernel"
LDS = 16384
NWG = 256 + 128 + 24

def build():
    a = Asm(); S = Alloc("s", 4, 100); V = Alloc("v", 1, 256)
    p_x, p_ws, p_a, p_b = S(2), S(2), S(2), S(2)
    srdX, srdT, srdO, srdB = S(4), S(4), S(4), S(4)
    sw, st0, st1, st2, st3, st4 = S(), S(), S(), S(), S(), S()
    spf = S(2)
    vl, vi, vq, vt0, vt1, vpf = V(), V(), V(), V(), V(), V()
    code_prefetch(a, spf, vt0, vpf, NAME, 4096)
    a(f"s_cmp_ge_u32 s2, {NWG}", f"s_cbranch_scc1 .L{NAME}_done")
    load_arg(a, p_ws, "ws")
    a(f"v_lshrrev_b32 {vt1}, 6, v0", f"v_and_b32 {vl}, 63, v0", f"v_readfirstlane_b32 {sw}, {vt1}",
      f"v_and_b32 {vi}, 15, v0", f"v_lshrrev_b32 {vq}, 4, {vl}")
    a(f"s_cmp_ge_u32 s2, 384", f"s_cbranch_scc1 .L{NAME}_extra", f"s_cmp_ge_u32 s2, 256", f"s_cbranch_scc1 .L{NAME}_wt")
    m0 = V.mark()
    load_arg(a, p_x, "x")
    table_srd(a, srdT, NAME)
    X = V(16); T16 = V(8); TW = V(16); T32 = V(32); D1 = V(32); B2 = V(16); tmp = V(16)
    st = V(4); Zs, Zq, vm, vsd = V(), V(), V(), V(); C0 = V(2); RS = V(2); vx, vtab = V(), V()
    aw0, aw1, aw2, ard = V(), V(), V(), V()
    D2 = R("v", D1.b, 32)
    D2 = V(32); O = V(16)
    a(f"v_lshlrev_b32 {vx}, 9, {vq}", f"v_lshl_add_u32 {vx}, {vi}, 2, {vx}", f"v_lshlrev_b32 {vtab}, 4, {vl}")
    a(f"s_lshr_b32 {st0}, s2, 5", f"s_lshl_b32 {st0}, {st0}, 8", f"s_and_b32 {st1}, s2, 31", f"s_add_u32 {st0}, {st0}, {st1}",
      f"s_lshl_b32 {st1}, {sw}, 6", f"s_add_u32 {st0}, {st0}, {st1}", f"s_lshl_b32 {st0}, {st0}, 11", f"s_add_u32 {st1}, {st0}, {32*2048}")
    a("s_waitcnt lgkmcnt(0)")
    srd(a, srdX, p_x, ASZ["x"])
    for rr in range(2):
        for mb in range(2):
            for jj in range(4):
                a(f"buffer_load_dword {X[rr*8+mb*4+jj]}, {vx}, {srdX}, {[st0, st1][rr]} offen offset:{128*jj+64*mb}")
    def tload(dst, blk):
        g = blk // 4
        if g != tload.g:
            a(f"s_mov_b32 {st2}, {g*4096}"); tload.g = g
        a(f"buffer_load_dwordx4 {dst}, {vtab}, {srdT}, {st2} offen offset:{(blk%4)*1024}")
    tload.g = -1
    for ri in range(2): tload(T16[4*ri:4*ri+4], T.T16 + ri)
    for b in range(4): tload(TW[4*b:4*b+4], T.TW1 + b)
    for b in range(8): tload(T32[4*b:4*b+4], T.T32 + b)
    ws_srd(a, srdO, p_ws, "Z1")
    a(f"v_lshl_add_u32 {vt0}, {vq}, 6, {vi}")
    a(f"s_lshr_b32 {st3}, {sw}, 1", f"s_and_b32 {st4}, {sw}, 1", f"s_lshl_b32 {st4}, {st4}, 3")
    def waddr(dst, vp, col):
        a(f"v_lshrrev_b32 {vt1}, 1, {vp}", f"v_and_b32 {vt1}, 3, {vt1}", f"v_xor_b32 {vt1}, {st3}, {vt1}")
        if col: a(f"v_xor_b32 {vt1}, 2, {vt1}")
        a(f"v_lshlrev_b32 {vt1}, 4, {vt1}", f"v_lshl_add_u32 {dst}, {vp}, 6, {vt1}", f"v_add_u32 {dst}, {st4}, {dst}")
    waddr(aw0, vt0, 0)
    a(f"v_sub_u32 {ard}, 208, {vt0}"); waddr(aw1, ard, 1)
    a(f"v_sub_u32 {ard}, 256, {vt0}", f"v_and_b32 {ard}, 255, {ard}"); waddr(aw2, ard, 1)
    a(f"v_lshrrev_b32 {vt0}, 2, v0" if False else f"v_lshrrev_b32 {vt0}, 2, {vl}", f"v_lshrrev_b32 {vt1}, 1, {vt0}", f"v_xor_b32 {vt1}, {vt1}, {vl}", f"v_and_b32 {vt1}, 3, {vt1}",
      f"v_lshlrev_b32 {vt1}, 4, {vt1}", f"v_lshl_add_u32 {ard}, {vt0}, 6, {vt1}", f"s_lshl_b32 {st3}, {sw}, 12", f"v_add_u32 {ard}, {st3}, {ard}")
    a(f"s_lshl_b32 {st4}, s2, 14", f"s_add_u32 {st3}, {st3}, {st4}")
    a(f"v_cmp_eq_u32 vcc, 0, {vi}")
    a("s_waitcnt vmcnt(14)")
    ones = st2
    a(f"s_mov_b32 {ones}, 0x3f803f80")
    for k in range(8):
        for rr in range(2):
            x = X[rr*8+k]
            if k == 0: a(f"v_dot2_f32_bf16 {st[rr]}, {x}, {ones}, 0", f"v_dot2_f32_bf16 {st[2+rr]}, {x}, {x}, 0")
            else: a(f"v_dot2c_f32_bf16 {st[rr]}, {ones}, {x}", f"v_dot2c_f32_bf16 {st[2+rr]}, {x}, {x}")
    a("s_waitcnt vmcnt(12)")
    for rr in range(2):
        for mb in range(2):
            for ri in range(2):
                a(mfma(D1[16*rr+8*mb+4*ri:][:4], X[8*rr+4*mb:][:4], T16[4*ri:][:4]))
    row_stats_reduce(a, st[0], st[1], st[2], st[3], Zs, Zq)
    ln_from_sums(a, Zs, Zq, vm, vsd, vt0, rstd=RS[0])
    a(f"v_mul_f32 {vm}, 0xc1800000, {vm}", f"v_cndmask_b32 {C0[0]}, 0, {vm}, vcc")
    bcast2(a, C0); bcast2(a, RS)
    a("s_waitcnt vmcnt(8)")
    for rr in range(2):
        for mb in range(2):
            cmul_tw(a, D1[16*rr+8*mb:][:4], D1[16*rr+8*mb+4:][:4], TW[4*mb:][:4], TW[8+4*mb:][:4], tmp[8*mb:][:8], B2[8*rr+4*mb:][:4], add=C0, addsel=rr)
    a("s_waitcnt vmcnt(0)")
    for ks in range(2):
        for rr in range(2):
            for hb in range(2):
                for ri in range(2):
                    d = D2[16*rr+8*hb+4*ri:][:4]
                    a(mfma(d, T32[4*(4*hb+2*ri+ks):][:4], B2[8*rr+4*ks:][:4], d if ks else None))
    for rr in range(2):
        for h in range(8):
            d = D2[16*rr+2*h:][:2]
            a(pk("mul", d, d, RS, sel=[None, rr]))
    for hb in range(2):
        for r in range(4):
            for rr in range(2):
                a(f"v_cvt_pk_bf16_f32 {O[(hb*4+r)*2+rr]}, {D2[16*rr+8*hb+r]}, {'-' if hb else ''}{D2[16*rr+8*hb+4+r]}")
            o = O[(hb*4+r)*2:][:2]
            if hb == 0: a(f"ds_write_b64 {aw0}, {o} offset:{r*1024}")
            elif r == 0: a(f"ds_write_b64 {aw2}, {o}")
            else: a(f"ds_write_b64 {aw1}, {o} offset:{(3-r)*1024}")
    a("s_waitcnt lgkmcnt(0)", "s_barrier")
    for n in range(4): a(f"ds_read_b128 {D1[4*n:][:4]}, {ard} offset:{n*1024}")
    for n in range(4):
        a(f"s_waitcnt lgkmcnt({3-n})", f"buffer_store_dwordx4 {D1[4*n:][:4]}, {vtab}, {srdO}, {st3} offen offset:{n*1024}")
    a("s_endpgm")
    hi1 = V.p
    V.reset(m0)
    a.label(f".L{NAME}_wt")
    load_arg(a, p_a, "wr"); load_arg(a, p_b, "wi")
    RE = V(16); IM = V(16); OUT = V(32); ad = V(4); vo = V()
    a(f"s_sub_u32 {st0}, s2, 256", f"s_and_b32 {st1}, {st0}, 1", f"s_lshr_b32 {st0}, {st0}, 1")
    a(f"s_lshr_b32 {st2}, {st0}, 4", f"s_lshl_b32 {st2}, {st2}, 4", f"s_and_b32 {st3}, {st0}, 1", f"s_lshl_b32 {st3}, {st3}, 3",
      f"s_add_u32 {st2}, {st2}, {st3}")
    a(f"s_lshr_b32 {st3}, {st0}, 1", f"s_and_b32 {st3}, {st3}, 7", f"s_lshl_b32 {st3}, {st3}, 8", f"s_add_u32 {st2}, {st2}, {st3}")
    a(f"v_and_b32 {vt0}, 7, v0", f"v_lshrrev_b32 {vt1}, 3, v0", f"v_add_u32 {vo}, {st2}, {vt0}")
    a(f"s_mul_i32 {st3}, {st1}, {257*2}", f"v_lshl_add_u32 {vt1}, {vt1}, 4, {st3}")
    a(f"s_cmp_eq_u32 {st1}, 1", f"s_cselect_b32 {st4}, -1, 1", f"s_movk_i32 {st2}, 1026")
    for r in range(4):
        a(f"v_add_u32 {ad[r]}, {64*r}, {vo}", f"v_mul_i32_i24 {ad[r]}, {st4}, {ad[r]}", f"v_and_b32 {ad[r]}, 2047, {ad[r]}",
          f"v_mad_u32_u24 {ad[r]}, {ad[r]}, {st2}, {vt1}")
    a(f"v_lshrrev_b32 {vt1}, 3, v0", f"v_lshlrev_b32 {vt1}, 16, {vt1}", f"v_lshl_add_u32 {vo}, {vt0}, 4, {vt1}",
      f"s_lshl_b32 {st0}, {st0}, 7", f"s_mul_i32 {st1}, {st1}, {257*8192}", f"s_add_u32 {st0}, {st0}, {st1}")
    a("s_waitcnt lgkmcnt(0)")
    srd(a, srdX, p_a, ASZ["wr"]); srd(a, srdB, p_b, ASZ["wi"]); ws_srd(a, srdO, p_ws, "WT")
    for r in range(4):
        a(f"buffer_load_dwordx4 {RE[4*r:][:4]}, {ad[r]}, {srdX}, 0 offen", f"buffer_load_dwordx4 {IM[4*r:][:4]}, {ad[r]}, {srdB}, 0 offen")
    a(f"s_mov_b32 {st1}, 0x05040100", f"s_mov_b32 {st2}, 0x07060302")
    for r in range(4):
        a(f"s_waitcnt vmcnt({6-2*r})")
        for e in range(8):
            a(f"v_perm_b32 {OUT[4*e+r]}, {IM[4*r+e//2]}, {RE[4*r+e//2]}, {[st1, st2][e%2]}")
    for e in range(8):
        a(f"buffer_store_dwordx4 {OUT[4*e:][:4]}, {vo}, {srdO}, {st0} offen")
        if e < 7: a(f"s_add_u32 {st0}, {st0}, 8192")
    a("s_endpgm")
    V.reset(m0)
    a.label(f".L{NAME}_extra")
    load_arg(a, p_a, "wr"); load_arg(a, p_b, "wi")
    vu, vrow, vre, vim, vo = V(), V(), V(), V(), V()
    a(f"s_sub_u32 {st0}, s2, 384", f"s_lshr_b32 {st1}, {st0}, 3", f"s_and_b32 {st0}, {st0}, 7", f"s_lshl_b32 {st0}, {st0}, 8",
      f"v_add_u32 {vu}, {st0}, v0")
    a(f"s_mov_b32 {st2}, 512", f"s_mov_b32 {st3}, {514*8192}", f"s_mov_b32 {st4}, 1",
      f"s_cmp_eq_u32 {st1}, 0", f"s_cselect_b32 {st2}, 256, {st2}", f"s_cselect_b32 {st3}, {256*8192}, {st3}",
      f"s_cmp_eq_u32 {st1}, 1", f"s_cselect_b32 {st2}, 0, {st2}", f"s_cselect_b32 {st3}, {513*8192}, {st3}", f"s_cselect_b32 {st4}, -1, {st4}",
      f"s_lshl_b32 {st2}, {st2}, 1", f"s_movk_i32 {st1}, 1026")
    a(f"v_mul_i32_i24 {vrow}, {st4}, {vu}", f"v_and_b32 {vrow}, 2047, {vrow}", f"v_mul_u32_u24 {vrow}, {st1}, {vrow}")
    a(f"v_bfe_u32 {vt0}, {vu}, 4, 2", f"v_lshlrev_b32 {vo}, 11, {vt0}",
      f"v_bfe_u32 {vt0}, {vu}, 8, 3", f"v_lshl_add_u32 {vo}, {vt0}, 8, {vo}",
      f"v_and_b32 {vt0}, 15, {vu}", f"v_lshl_add_u32 {vo}, {vt0}, 4, {vo}",
      f"v_bfe_u32 {vt0}, {vu}, 6, 2", f"v_lshl_add_u32 {vo}, {vt0}, 2, {vo}")
    a("s_waitcnt lgkmcnt(0)")
    srd(a, srdX, p_a, ASZ["wr"]); srd(a, srdB, p_b, ASZ["wi"]); ws_srd(a, srdO, p_ws, "WT")
    a(f"buffer_load_ushort {vre}, {vrow}, {srdX}, {st2} offen", f"buffer_load_ushort {vim}, {vrow}, {srdB}, {st2} offen",
      "s_waitcnt vmcnt(0)", f"v_lshl_or_b32 {vre}, {vim}, 16, {vre}", f"buffer_store_dword {vre}, {vo}, {srdO}, {st3} offen")
    a.label(f".L{NAME}_done")
    a("s_endpgm")
    return a.l, V.hi, 0, S.hi
```

```python
from common import *
NAME = "fft_cols_kernel"
LDS = 49152
NWG = 256 + 144
LA, LB, LC = 0, 16384, 32768

def interleave(*streams):
    out = []
    n = max(len(s) for s in streams)
    for k in range(n):
        for s in streams:
            if k < len(s): out.append(s[k])
    return out

def build():
    a = Asm(); S = Alloc("s", 4, 100); V = Alloc("v", 1, 256)
    p_ws, p_a = S(2), S(2)
    srdZ, srdT, srdW, srdO = S(4), S(4), S(4), S(4)
    sw, sp, st0, st1, st2, st3, st4 = S(), S(), S(), S(), S(), S(), S()
    spf = S(2)
    vl, vi, vq, vt0, vt1, vpf = V(), V(), V(), V(), V(), V()
    code_prefetch(a, spf, vt0, vpf, NAME, 8192)
    a(f"s_cmp_ge_u32 s2, {NWG}", f"s_cbranch_scc1 .L{NAME}_done")
    load_arg(a, p_ws, "ws")
    a(f"v_lshrrev_b32 {vt1}, 6, v0", f"v_and_b32 {vl}, 63, v0", f"v_readfirstlane_b32 {sw}, {vt1}",
      f"v_and_b32 {vi}, 15, v0", f"v_lshrrev_b32 {vq}, 4, {vl}")
    a(f"s_cmp_ge_u32 s2, 256", f"s_cbranch_scc1 .L{NAME}_cs")
    m0 = V.mark()
    table_srd(a, srdT, NAME)
    vtab, vz, vA0, vA1, vc0, vc1, vr0, vr1 = V(), V(), V(), V(), V(), V(), V(), V()
    SR = V(2)
    AOP = V(64); T64 = V(32); D1 = V(32); TWf = V(16); T32 = V(32); WA = V(8); WB = V(8); TWi = V(16); WX = V(24)
    tmp = AOP[0:16]; B2 = AOP[16:32]; D2 = AOP[32:64]
    a(f"s_and_b32 {sp}, s2, 7", f"s_lshl_b32 {sp}, {sp}, 5", f"s_lshr_b32 {st0}, s2, 3", f"s_add_u32 {sp}, {sp}, {st0}")
    a(f"v_lshlrev_b32 {vtab}, 4, {vl}")
    a(f"v_lshrrev_b32 {vt0}, 4, {vl}", f"v_and_b32 {vt0}, 2, {vt0}", f"v_xor_b32 {vt0}, {vt0}, {vl}", f"v_and_b32 {vt0}, 3, {vt0}",
      f"v_lshlrev_b32 {vt0}, 4, {vt0}", f"v_lshrrev_b32 {vt1}, 2, {vl}", f"v_lshl_add_u32 {vz}, {vt1}, 14, {vt0}")
    a(f"s_lshl_b32 {st0}, {sw}, 20", f"s_lshl_b32 {st1}, {sp}, 6", f"s_add_u32 {st0}, {st0}, {st1}", f"s_lshl_b32 {st1}, {sw}, 12")
    a(f"s_lshl_b32 {st2}, {sp}, 13", f"s_lshl_b32 {st3}, {sw}, 11", f"s_add_u32 {st2}, {st2}, {st3}")
    a(f"s_sub_u32 {st4}, 512, {sp}", f"s_lshl_b32 {st4}, {st4}, 13", f"s_add_u32 {st4}, {st4}, {st3}")
    a("s_waitcnt lgkmcnt(0)")
    ws_srd(a, srdZ, p_ws, "Z1"); ws_srd(a, srdW, p_ws, "WT")
    a(f"s_cmp_lg_u32 {sp}, 0", f"s_cbranch_scc1 .L{NAME}_nox")
    for x, col in enumerate((513, 514, 256)):
        a(f"s_add_u32 {st3}, {st2}, {col*8192}")
        for hb in range(2): a(f"buffer_load_dwordx4 {WX[8*x+4*hb:][:4]}, {vtab}, {srdW}, {st3} offen offset:{1024*hb}")
    a.label(f".L{NAME}_nox")
    for n in range(4):
        a(f"s_mov_b32 m0, {st1}", f"s_add_u32 {st1}, {st1}, 1024", f"buffer_load_dwordx4 {vz}, {srdZ}, {st0} offen lds")
        if n < 3: a(f"s_add_u32 {st0}, {st0}, {16*16384}")
    a(f"s_lshl_b32 {st0}, {sw}, 14", f"s_add_u32 {st0}, {st0}, {T.K2W*1024}")
    def wl(dst, blk):
        if blk % 4 == 0 and blk: a(f"s_add_u32 {st0}, {st0}, 4096")
        a(f"buffer_load_dwordx4 {dst}, {vtab}, {srdT}, {st0} offen offset:{(blk%4)*1024}")
    for b in range(8): wl(T64[4*b:][:4], b)
    for b in range(4): wl(TWf[4*b:][:4], 8+b)
    for b in range(8):
        if b % 4 == 0: a(f"s_mov_b32 {st1}, {(T.T32+b)*1024}")
        a(f"buffer_load_dwordx4 {T32[4*b:][:4]}, {vtab}, {srdT}, {st1} offen offset:{(b%4)*1024}")
    for hb in range(2):
        a(f"buffer_load_dwordx4 {WA[4*hb:][:4]}, {vtab}, {srdW}, {st2} offen offset:{1024*hb}",
          f"buffer_load_dwordx4 {WB[4*hb:][:4]}, {vtab}, {srdW}, {st4} offen offset:{1024*hb}")
    for b in range(4): wl(TWi[4*b:][:4], 12+b)
    ws_srd(a, srdO, p_ws, "Z2")
    a(f"v_lshrrev_b32 {vt0}, 1, {vq}", f"v_lshl_add_u32 {vt0}, {vt0}, 5, {vi}", f"v_lshlrev_b32 {vt0}, 6, {vt0}",
      f"v_lshrrev_b32 {vt1}, 2, {vi}", f"v_and_b32 {vt1}, 2, {vt1}", f"v_and_b32 {vA1}, 1, {vq}", f"v_xor_b32 {vt1}, {vt1}, {vA1}",
      f"v_lshl_add_u32 {vA0}, {vt1}, 4, {vt0}", f"v_xor_b32 {vA1}, 32, {vA0}")
    a(f"v_lshrrev_b32 {vt0}, 1, {vq}", f"v_lshlrev_b32 {vt0}, 2, {vt0}", f"v_and_b32 {vt1}, 1, {vq}", f"v_or_b32 {vt0}, {vt0}, {vt1}",
      f"v_xor_b32 {vt0}, {vt0}, {vi}", f"v_and_b32 {vt0}, 7, {vt0}", f"v_lshlrev_b32 {vt0}, 4, {vt0}",
      f"v_lshl_add_u32 {vc0}, {vi}, 8, {vt0}", f"s_lshl_b32 {st3}, {sw}, 12", f"s_add_u32 {st1}, {st3}, {LC}", f"v_add_u32 {vc0}, {st1}, {vc0}",
      f"v_xor_b32 {vc1}, 32, {vc0}")
    a(f"v_xor_b32 {vt0}, {vi}, {vq}", f"v_lshlrev_b32 {vt0}, 4, {vt0}", f"v_lshl_add_u32 {vr0}, {vq}, 8, {vt0}", f"v_add_u32 {vr0}, {st1}, {vr0}",
      f"v_xor_b32 {vr1}, 64, {vr0}")
    a(f"s_lshl_b32 {st4}, {sp}, 14", f"s_add_u32 {st4}, {st4}, {st3}")
    a(f"v_cvt_f32_u32 {vt0}, {sp}", f"v_mul_f32 {vt0}, {hex(f2u(-1.0/1024))}, {vt0}", f"v_sin_f32 {SR[0]}, {vt0}", f"v_cos_f32 {SR[1]}, {vt0}")
    a("s_waitcnt vmcnt(28)", "s_barrier")
    def rd(col, mb, ks): return f"ds_read_b128 {AOP[32*col+16*mb+4*ks:][:4]}, {[vA0, vA1][col]} offset:{LA + 4096*ks + 1024*mb}"
    for mb in range(2):
        for ks in range(4): a(rd(0, mb, ks))
    a("s_waitcnt vmcnt(20)")
    def big_stage(rdf):
        pend = [rdf(1, mb, ks) for mb in range(2) for ks in range(4)]
        for col in range(2):
            for mb in range(2):
                a(f"s_waitcnt lgkmcnt({[4, 8, 4, 0][2*col+mb]})")
                for ks in range(4):
                    for ri in range(2):
                        d = D1[16*col+8*mb+4*ri:][:4]
                        a(mfma(d, AOP[32*col+16*mb+4*ks:][:4], T64[4*(2*ks+ri):][:4], d if ks else None))
                        if col == 0 and mb == 0: a(pend.pop(0))
    big_stage(rd)
    a("s_waitcnt vmcnt(16)")
    for col in range(2):
        for mb in range(2):
            cmul_tw(a, D1[16*col+8*mb:][:4], D1[16*col+8*mb+4:][:4], TWf[4*mb:][:4], TWf[8+4*mb:][:4], tmp[8*mb:][:8], B2[8*col+4*mb:][:4])
    a("s_waitcnt vmcnt(8)")
    for ks in range(2):
        for col in range(2):
            for hb in range(2):
                for ri in range(2):
                    d = D2[16*col+8*hb+4*ri:][:4]
                    a(mfma(d, T32[4*(4*hb+2*ri+ks):][:4], B2[8*col+4*ks:][:4], d if ks else None))
    a("s_waitcnt vmcnt(4)")
    A3 = B2
    FT = [D1[0:20], R("v", D1.b+20, 20)]
    assert TWf.b == D1.b + 32
    a(f"s_cmp_eq_u32 {sp}, 0", f"s_cbranch_scc1 .L{NAME}_special")
    def unpack(dlo, dhi, src):
        return [f"v_lshlrev_b32 {dlo[e]}, 16, {src[e]}" for e in range(2)] + [f"v_and_b32 {dhi[e]}, 0xffff0000, {src[e]}" for e in range(2)]
    def filt(hb, h, t):
        o = []
        are, aim, bre, bim = t[0:2], t[2:4], t[4:6], t[6:8]
        Sre, Sim, Dre, Dim = t[8:10], t[10:12], t[12:14], t[14:16]
        o += unpack(are, aim, WA[4*hb+2*h:][:2]) + unpack(bre, bim, WB[4*hb+2*h:][:2])
        o += [pk("add", Sre, are, bre), pk("add", Dre, are, bre, neg=[0, 1]), pk("add", Sim, aim, bim, neg=[0, 1]), pk("add", Dim, aim, bim)]
        m11r, m11i, m22r, m22i = are, aim, bre, bim
        o += [pk("fma", m11r, Dre, SR, Sre, sel=[None, 0, None]), pk("fma", m11i, Dim, SR, Sim, sel=[None, 0, None]),
              pk("fma", m22r, Dre, SR, Sre, sel=[None, 0, None], neg=[1, 0, 0]), pk("fma", m22i, Dim, SR, Sim, sel=[None, 0, None], neg=[1, 0, 0]),
              pk("mul", Dre, Dre, SR, sel=[None, 1]), pk("mul", Dim, Dim, SR, sel=[None, 1])]
        nr, ni = Dre, Dim
        Pr, Pi = D2[8*hb+2*h:][:2], D2[8*hb+4+2*h:][:2]
        Qr, Qi = D2[16+8*hb+2*h:][:2], D2[16+8*hb+4+2*h:][:2]
        pr, pi, qr, qi = Sre, Sim, t[16:18], t[18:20]
        o += [pk("mul", pr, m11r, Pr), pk("mul", pi, m11r, Pi), pk("mul", qr, m22r, Qr), pk("mul", qi, m22r, Qi),
              pk("fma", pr, m11i, Pi, pr, neg=[1, 0, 0]), pk("fma", pi, m11i, Pr, pi), pk("fma", qr, m22i, Qi, qr, neg=[1, 0, 0]), pk("fma", qi, m22i, Qr, qi),
              pk("fma", pr, nr, Qi, pr, neg=[1, 0, 0]), pk("fma", pi, nr, Qr, pi), pk("fma", qr, nr, Pi, qr), pk("fma", qi, nr, Pr, qi, neg=[1, 0, 0]),
              pk("fma", pr, ni, Qr, pr, neg=[1, 0, 0]), pk("fma", pi, ni, Qi, pi, neg=[1, 0, 0]), pk("fma", qr, ni, Pr, qr), pk("fma", qi, ni, Pi, qi)]
        for e in range(2):
            o += [f"v_cvt_pk_bf16_f32 {A3[4*hb+2*h+e]}, {pr[e]}, -{pi[e]}", f"v_cvt_pk_bf16_f32 {A3[8+4*hb+2*h+e]}, {qr[e]}, -{qi[e]}"]
        return o
    for hb in range(2):
        a(*interleave(filt(hb, 0, FT[0]), filt(hb, 1, FT[1])))
    a.label(f".L{NAME}_inv")
    D3 = D1
    for ks in range(2):
        for col in range(2):
            for nb in range(2):
                for ri in range(2):
                    d = D3[16*col+8*nb+4*ri:][:4]
                    a(mfma(d, A3[8*col+4*ks:][:4], T32[4*(4*nb+2*ri+ks):][:4], d if ks else None))
    a("s_waitcnt vmcnt(0)")
    X3 = D2
    a(f"s_lshl_b32 {st0}, {sw}, 10", f"v_add_u32 {vt0}, {st0}, {vtab}")
    for col in range(2):
        for nb in range(2):
            x = X3[8*col+4*nb:][:4]
            cmul_tw(a, D3[16*col+8*nb:][:4], D3[16*col+8*nb+4:][:4], TWi[4*nb:][:4], TWi[8+4*nb:][:4], tmp[8*nb:][:8], x)
            a(f"ds_write_b128 {vt0}, {x} offset:{LB + (2*col+nb)*4096}")
    a("s_waitcnt lgkmcnt(0)", "s_barrier")
    def rd2(col, mb, ks): return f"ds_read_b128 {AOP[32*col+16*mb+4*ks:][:4]}, {vtab} offset:{LB + (2*col+mb)*4096 + 1024*ks}"
    for mb in range(2):
        for ks in range(4): a(rd2(0, mb, ks))
    big_stage(rd2)
    O = TWi
    for col in range(2):
        for mb in range(2):
            o = O[8*col+4*mb:][:4]
            for r in range(4):
                a(f"v_cvt_pk_bf16_f32 {o[r]}, {D1[16*col+8*mb+r]}, {'-' if col else ''}{D1[16*col+8*mb+4+r]}")
            a(f"ds_write_b128 {[vc0, vc1][col]}, {o} offset:{128*mb}")
    a("s_waitcnt lgkmcnt(0)")
    for n in range(4): a(f"ds_read_b128 {AOP[4*n:][:4]}, {[vr0, vr1][n%2]} offset:{1024*n}")
    for n in range(4):
        a(f"s_waitcnt lgkmcnt({3-n})", f"buffer_store_dwordx4 {AOP[4*n:][:4]}, {vtab}, {srdO}, {st4} offen offset:{n*1024}")
    a("s_endpgm")
    a.label(f".L{NAME}_special")
    vu, vm0, vm1 = FT[1][16], FT[1][17], FT[1][18]
    QM = TWf[8:16]; QMi = tmp[0:8]
    a(f"v_lshl_add_u32 {vu}, {vq}, 8, {vi}", f"s_lshl_b32 {st0}, {sw}, 4", f"v_add_u32 {vu}, {st0}, {vu}",
      f"v_sub_u32 {vm0}, 832, {vu}", f"v_lshlrev_b32 {vm0}, 2, {vm0}",
      f"v_sub_u32 {vm1}, 0x800, {vu}", f"v_and_b32 {vm1}, 0x7ff, {vm1}", f"v_lshlrev_b32 {vm1}, 2, {vm1}", f"v_lshlrev_b32 {vu}, 2, {vu}")
    for hb in range(2):
        for ri in range(2):
            for r in range(4):
                a(f"ds_write_b32 {vu}, {D2[8*hb+4*ri+r]} offset:{LC + 8192*ri + 4096*hb + 256*r}")
    a("s_waitcnt lgkmcnt(0)", "s_barrier")
    for hb in range(2):
        for ri in range(2):
            for r in range(4):
                d = [QM, QMi][ri][4*hb+r]
                if hb == 0 and r == 0: a(f"ds_read_b32 {d}, {vm1} offset:{LC + 8192*ri}")
                else: a(f"ds_read_b32 {d}, {vm0} offset:{LC + 8192*ri + 4096*(1-hb) + 256*(3-r)}")
        a("s_waitcnt lgkmcnt(0)")
    t = FT[0]
    for hb in range(2):
        for h in range(2):
            sl = lambda X, o: X[o+4*hb+2*h:][:2]
            ar_, ai, br_, bi = t[0:2], t[2:4], t[4:6], t[6:8]
            xr, xi, yr, yi = t[8:10], t[10:12], t[12:14], t[14:16]
            a(*unpack(ar_, ai, sl(WA, 0)), *unpack(xr, xi, sl(WX, 0)), *unpack(br_, bi, sl(WB, 0)), *unpack(yr, yi, sl(WX, 8)))
            a(pk("add", ar_, ar_, xr), pk("add", ai, ai, xi, neg=[0, 1]), pk("add", br_, br_, yr), pk("add", bi, yi, bi, neg=[0, 1]))
            Sre, Sim, Dre, Dim = xr, xi, yr, yi
            a(pk("add", Sre, ar_, br_), pk("add", Sim, ai, bi), pk("add", Dre, ar_, br_, neg=[0, 1]), pk("add", Dim, ai, bi, neg=[0, 1]))
            Pr, Pi = D2[8*hb+2*h:][:2], D2[8*hb+4+2*h:][:2]
            Rr, Ri = D2[16+8*hb+2*h:][:2], D2[16+8*hb+4+2*h:][:2]
            qr, qi = sl(QM, 0), sl(QMi, 0)
            pr, pi = ar_, ai
            a(pk("mul", pr, Sre, Pr), pk("mul", pi, Sre, Pi), pk("fma", pr, Sim, Pi, pr, neg=[1, 0, 0]), pk("fma", pi, Sim, Pr, pi),
              pk("fma", pr, Dim, qr, pr, neg=[1, 0, 0]), pk("fma", pi, Dre, qr, pi), pk("fma", pr, Dre, qi, pr), pk("fma", pi, Dim, qi, pi))
            cr, ci = br_, bi
            a(*unpack(cr, ci, sl(WX, 16)))
            a(pk("mul", xr, cr, Rr), pk("mul", xi, cr, Ri), pk("fma", xr, ci, Ri, xr, neg=[1, 0, 0]), pk("fma", xi, ci, Rr, xi))
            for e in range(2):
                a(f"v_mul_f32 {pr[e]}, 0.5, {pr[e]}", f"v_mul_f32 {pi[e]}, -0.5, {pi[e]}", f"v_add_f32 {xr[e]}, {xr[e]}, {xr[e]}", f"v_mul_f32 {xi[e]}, -2.0, {xi[e]}")
            for e in range(2):
                a(f"v_cvt_pk_bf16_f32 {A3[4*hb+2*h+e]}, {pr[e]}, {pi[e]}", f"v_cvt_pk_bf16_f32 {A3[8+4*hb+2*h+e]}, {xr[e]}, {xi[e]}")
    a(f"s_branch .L{NAME}_inv")
    V.reset(m0)
    a.label(f".L{NAME}_cs")
    X = V(64); acc = V(8); vo = V()
    a(f"s_sub_u32 {st0}, s2, 256", f"s_cmp_ge_u32 {st0}, 32", f"s_cbranch_scc1 .L{NAME}_cs3")
    load_arg(a, p_a, "w1")
    a(f"s_and_b32 {st1}, {st0}, 3", f"s_lshr_b32 {st0}, {st0}, 2", f"s_mov_b32 {st2}, 2048", f"s_mov_b32 {st3}, {ASZ['w1']}", f"s_lshl_b32 {st4}, {st1}, 10",
      f"s_branch .L{NAME}_csgo")
    a.label(f".L{NAME}_cs3")
    load_arg(a, p_a, "w3")
    a(f"s_sub_u32 {st1}, {st0}, 32", f"s_mul_hi_u32 {st0}, {st1}, {(2**32+13)//14}", f"s_mul_i32 {st2}, {st0}, 14", f"s_sub_u32 {st1}, {st1}, {st2}",
      f"s_mov_b32 {st2}, 7168", f"s_mov_b32 {st3}, {ASZ['w3']}", f"s_lshl_b32 {st4}, {st1}, 10", f"s_add_u32 {st4}, {st4}, 4096")
    a.label(f".L{NAME}_csgo")
    a(f"v_lshrrev_b32 {vt0}, 5, v0", f"s_lshl_b32 {sp}, {st0}, 3", f"v_add_u32 {vt0}, {sp}, {vt0}", f"v_lshlrev_b32 {vt0}, 4, {vt0}",
      f"v_mul_lo_u32 {vt0}, {vt0}, {st2}", f"v_and_b32 {vt1}, 31, v0", f"v_lshl_add_u32 {vt0}, {vt1}, 4, {vt0}", f"s_lshl_b32 {st1}, {st1}, 9")
    a(f"s_mul_i32 {st0}, {st0}, {4608*4}", f"s_add_u32 {st4}, {st4}, {st0}")
    a("s_waitcnt lgkmcnt(0)")
    a(f"s_mov_b32 {srdZ[0]}, {p_a[0]}", f"s_mov_b32 {srdZ[1]}, {p_a[1]}", f"s_mov_b32 {srdZ[2]}, {st3}", f"s_mov_b32 {srdZ[3]}, 0x20000")
    ws_srd(a, srdO, p_ws, "CSP")
    for r in range(16):
        a(f"buffer_load_dwordx4 {X[4*r:][:4]}, {vt0}, {srdZ}, {st1} offen")
        if r < 15: a(f"s_add_u32 {st1}, {st1}, {st2}")
    a(f"s_mov_b32 {st0}, 0x3f80", f"s_mov_b32 {st1}, 0x3f800000")
    for r in range(16):
        a(f"s_waitcnt vmcnt({15-r})")
        for j in range(8):
            x = X[4*r+j//2]; s = [st0, st1][j%2]
            a(f"v_dot2_f32_bf16 {acc[j]}, {x}, {s}, 0" if r == 0 else f"v_dot2c_f32_bf16 {acc[j]}, {s}, {x}")
    a(f"v_lshlrev_b32 {vt0}, 5, v0", f"ds_write_b128 {vt0}, {acc[0:4]}", f"ds_write_b128 {vt0}, {acc[4:8]} offset:16",
      f"v_lshlrev_b32 {vo}, 2, v0", "s_waitcnt lgkmcnt(0)", "s_barrier")
    for r in range(8): a(f"ds_read_b32 {X[r]}, {vo} offset:{1024*r}")
    a("s_waitcnt lgkmcnt(0)")
    for d in (4, 2, 1):
        for r in range(d): a(f"v_add_f32 {X[r]}, {X[r]}, {X[r+d]}")
    a(f"buffer_store_dword {X[0]}, {vo}, {srdO}, {st4} offen")
    a.label(f".L{NAME}_done")
    a("s_endpgm")
    return a.l, V.hi, 0, S.hi
```

```python
from common import *
NAME = "fft_rows_inv_kernel"
LDS = 49152
NWG = 256 + 18
LZ, LX, LH = 0, 16384, 32768

def build():
    a = Asm(); S = Alloc("s", 4, 100); V = Alloc("v", 1, 256)
    p_ws, p_x = S(2), S(2)
    srdZ, srdT, srdX, srdO, srdH, srdS = S(4), S(4), S(4), S(4), S(4), S(4)
    sw, sj, st0, st1, st2, st3, st4, ones = S(), S(), S(), S(), S(), S(), S(), S()
    spf = S(2)
    vl, vi, vq, vt0, vt1, vpf = V(), V(), V(), V(), V(), V()
    code_prefetch(a, spf, vt0, vpf, NAME, 8192)
    a(f"s_cmp_ge_u32 s2, {NWG}", f"s_cbranch_scc1 .L{NAME}_done")
    load_arg(a, p_ws, "ws")
    a(f"v_lshrrev_b32 {vt1}, 6, v0", f"v_and_b32 {vl}, 63, v0", f"v_readfirstlane_b32 {sw}, {vt1}",
      f"v_and_b32 {vi}, 15, v0", f"v_lshrrev_b32 {vq}, 4, {vl}")
    a(f"s_cmp_ge_u32 s2, 256", f"s_cbranch_scc1 .L{NAME}_cs")
    m0 = V.mark()
    load_arg(a, p_x, "x")
    table_srd(a, srdT, NAME)
    vtab, vz, vx, ar0, ar1, ar2, vo = V(), V(), V(), V(), V(), V(), V()
    aw = V(4); ard = V(2)
    ZI = V(16); T32 = V(32); TW = V(16); T16 = V(8); X = V(16); D1 = V(32); tmp = V(16); A2 = V(16); U = V(32); HP = V(16); XP = V(16)
    st = V(4); Zs, Zq, vsd = V(), V(), V(); M = V(2); RS = V(2); SO = V(2)
    a(f"s_and_b32 {sj}, s2, 7", f"s_lshl_b32 {sj}, {sj}, 5", f"s_lshr_b32 {st0}, s2, 3", f"s_add_u32 {sj}, {sj}, {st0}")
    a(f"v_lshlrev_b32 {vtab}, 4, {vl}")
    a(f"v_xor_b32 {vt0}, {vq}, {vl}", f"v_and_b32 {vt0}, 3, {vt0}", f"v_lshlrev_b32 {vt0}, 4, {vt0}", f"v_lshrrev_b32 {vt1}, 2, {vl}",
      f"v_lshl_add_u32 {vz}, {vt1}, 14, {vt0}")
    a(f"s_lshl_b32 {st0}, {sw}, 20", f"s_lshl_b32 {st1}, {sj}, 6", f"s_add_u32 {st0}, {st0}, {st1}", f"s_lshl_b32 {st1}, {sw}, 12")
    a(f"v_lshlrev_b32 {vx}, 4, {vq}", f"v_lshl_add_u32 {vx}, {vi}, 7, {vx}",
      f"s_lshl_b32 {st2}, {sj}, 2", f"s_add_u32 {st2}, {st2}, {sw}", f"s_lshl_b32 {st2}, {st2}, 12")
    a("s_waitcnt lgkmcnt(0)")
    ws_srd(a, srdZ, p_ws, "Z2"); srd(a, srdX, p_x, ASZ["x"])
    for n in range(4):
        a(f"s_mov_b32 m0, {st1}", f"s_add_u32 {st1}, {st1}, 1024", f"buffer_load_dwordx4 {vz}, {srdZ}, {st0} offen lds")
        if n < 3: a(f"s_add_u32 {st0}, {st0}, {16*16384}")
    def tload(dst, blk):
        g = blk // 4
        if g != tload.g:
            a(f"s_mov_b32 {st3}, {g*4096}"); tload.g = g
        a(f"buffer_load_dwordx4 {dst}, {vtab}, {srdT}, {st3} offen offset:{(blk%4)*1024}")
    tload.g = -1
    for b in range(8): tload(T32[4*b:][:4], T.T32 + b)
    for b in range(4): tload(TW[4*b:][:4], T.TW3 + b)
    for b in range(2): tload(T16[4*b:][:4], T.T16 + b)
    for rr in range(2):
        for mb in range(2):
            a(f"buffer_load_dwordx4 {X[8*rr+4*mb:][:4]}, {vx}, {srdX}, {st2} offen offset:{2048*rr+64*mb}")
    ws_srd(a, srdO, p_ws, "XB"); ws_srd(a, srdH, p_ws, "H"); ws_srd(a, srdS, p_ws, "ST2")
    a(f"v_lshl_add_u32 {vt0}, {vq}, 6, {vi}", f"s_lshr_b32 {st3}, {sw}, 1", f"s_and_b32 {st4}, {sw}, 1", f"s_lshl_b32 {st4}, {st4}, 3")
    def raddr(dst, vp, col):
        a(f"v_bfe_u32 {vt1}, {vp}, 2, 2", f"v_xor_b32 {vt1}, {st3}, {vt1}")
        if col: a(f"v_xor_b32 {vt1}, 2, {vt1}")
        a(f"v_lshlrev_b32 {vt1}, 4, {vt1}", f"v_lshl_add_u32 {dst}, {vp}, 6, {vt1}", f"v_add_u32 {dst}, {st4}, {dst}")
    raddr(ar0, vt0, 0)
    a(f"v_sub_u32 {vz}, 208, {vt0}"); raddr(ar1, vz, 1)
    a(f"v_sub_u32 {vz}, 256, {vt0}", f"v_and_b32 {vz}, 255, {vz}"); raddr(ar2, vz, 1)
    a(f"s_lshl_b32 {st3}, {sw}, 1", f"v_and_b32 {vt0}, 7, {vi}", f"v_xor_b32 {vt0}, {st3}, {vt0}", f"v_lshlrev_b32 {vt0}, 4, {vt0}",
      f"v_lshl_add_u32 {vt0}, {vi}, 10, {vt0}", f"v_lshrrev_b32 {vt1}, 1, {vq}", f"v_lshl_add_u32 {vt0}, {vt1}, 3, {vt0}",
      f"v_and_b32 {vt1}, 1, {vq}", f"v_lshl_add_u32 {aw[0]}, {vt1}, 8, {vt0}", f"v_xor_b32 {aw[1]}, 16, {aw[0]}")
    a(f"v_lshrrev_b32 {vt0}, 3, {vl}", f"v_and_b32 {vt1}, 7, {vl}", f"s_lshl_b32 {st3}, {sw}, 2", f"s_and_b32 {st3}, {st3}, 4",
      f"v_lshlrev_b32 {vo}, 4, {vt1}", f"v_xor_b32 {vt1}, {st3}, {vt1}", f"v_lshlrev_b32 {vt1}, 4, {vt1}", f"v_lshl_add_u32 {ard[0]}, {vt0}, 7, {vt1}",
      f"s_lshl_b32 {st3}, {sw}, 12", f"v_add_u32 {ard[0]}, {st3}, {ard[0]}", f"v_lshl_add_u32 {vo}, {vt0}, 8, {vo}")
    a(f"s_lshr_b32 {st0}, {sj}, 1", f"s_lshl_b32 {st0}, {st0}, 15", f"s_and_b32 {st1}, {sj}, 1", f"s_lshl_b32 {st1}, {st1}, 7", f"s_add_u32 {st0}, {st0}, {st1}",
      f"s_lshl_b32 {st1}, {sw}, 13", f"s_add_u32 {st0}, {st0}, {st1}", f"s_mov_b32 {ones}, 0x3f803f80")
    a("s_waitcnt vmcnt(18)", "s_barrier")
    order = (0, 2, 1, 3)
    for ks in range(2):
        for n in range(4):
            jj = order[n]; d = ZI[8*ks+2*n:][:2]
            if ks == 0: a(f"ds_read_b64 {d}, {ar0} offset:{LZ + 1024*jj}")
            elif jj == 0: a(f"ds_read_b64 {d}, {ar2} offset:{LZ}")
            else: a(f"ds_read_b64 {d}, {ar1} offset:{LZ + 1024*(3-jj)}")
    for ks in range(2):
        a(f"s_waitcnt lgkmcnt({4-4*ks})", f"v_swap_b32 {ZI[8*ks+1]}, {ZI[8*ks+4]}", f"v_swap_b32 {ZI[8*ks+3]}, {ZI[8*ks+6]}")
    a("s_waitcnt vmcnt(10)")
    for ks in range(2):
        for rr in range(2):
            for nb in range(2):
                for ri in range(2):
                    d = D1[16*rr+8*nb+4*ri:][:4]
                    a(mfma(d, ZI[8*ks+4*rr:][:4], T32[4*(4*nb+2*ri+ks):][:4], d if ks else None))
    a("s_waitcnt vmcnt(6)")
    for rr in range(2):
        for nb in range(2):
            cmul_tw(a, D1[16*rr+8*nb:][:4], D1[16*rr+8*nb+4:][:4], TW[4*nb:][:4], TW[8+4*nb:][:4], tmp[8*nb:][:8], A2[8*rr+4*nb:][:4])
    a("s_waitcnt vmcnt(4)")
    for rr in range(2):
        for mb in range(2):
            for ri in range(2):
                a(mfma(D1[16*rr+8*mb+4*ri:][:4], A2[8*rr+4*mb:][:4], T16[4*ri:][:4]))
    a("s_waitcnt vmcnt(0)")
    def unpack(dst8, src4):
        for r in range(4): a(f"v_lshlrev_b32 {dst8[r]}, 16, {src4[r]}", f"v_and_b32 {dst8[4+r]}, 0xffff0000, {src4[r]}")
    def pack(dst4, src8):
        for r in range(4): a(f"v_cvt_pk_bf16_f32 {dst4[r]}, {src8[r]}, {src8[4+r]}")
    def stage(src, base):
        for rr in range(2):
            for mb in range(2):
                for e in range(2):
                    ad = aw[0] if rr == 0 else aw[1]
                    a(f"ds_write_b64 {ad}, {src[8*rr+4*mb+2*e:][:2]} offset:{base + 512*mb + 128*e}")
    def stats(src):
        for k in range(8):
            for rr in range(2):
                x = src[8*rr+k]
                if k == 0: a(f"v_dot2_f32_bf16 {st[rr]}, {x}, {ones}, 0", f"v_dot2_f32_bf16 {st[2+rr]}, {x}, {x}, 0")
                else: a(f"v_dot2c_f32_bf16 {st[rr]}, {ones}, {x}", f"v_dot2c_f32_bf16 {st[2+rr]}, {x}, {x}")
        row_stats_reduce(a, st[0], st[1], st[2], st[3], Zs, Zq)
    for g in range(4): unpack(U[8*g:][:8], X[4*g:][:4])
    for g in range(4):
        for h in range(2):
            a(pk("add", U[8*g+2*h:][:2], U[8*g+2*h:][:2], D1[8*g+2*h:][:2]),
              pk("add", U[8*g+4+2*h:][:2], U[8*g+4+2*h:][:2], D1[8*g+4+2*h:][:2], neg=[0, 1]))
    for g in range(4): pack(HP[4*g:][:4], U[8*g:][:8])
    stats(HP)
    stage(HP, LH)
    for g in range(4): unpack(U[8*g:][:8], HP[4*g:][:4])
    ln_from_sums(a, Zs, Zq, M[0], vsd, vt0, rstd=RS[0])
    bcast2(a, M); bcast2(a, RS)
    for g in range(4):
        for h in range(4): a(pk("add", U[8*g+2*h:][:2], U[8*g+2*h:][:2], M, sel=[None, g//2], neg=[0, 1]))
    for g in range(4): pack(XP[4*g:][:4], U[8*g:][:8])
    for g in range(4): unpack(U[8*g:][:8], XP[4*g:][:4])
    for g in range(4):
        for h in range(4): a(pk("mul", U[8*g+2*h:][:2], U[8*g+2*h:][:2], RS, sel=[None, g//2]))
    for g in range(4): pack(XP[4*g:][:4], U[8*g:][:8])
    stage(XP, LX)
    stats(XP)
    a("s_waitcnt lgkmcnt(0)", "s_barrier")
    for n in range(1, 4): a(f"v_xor_b32 {aw[n]}, {16*n}, {ard[0]}")
    rdv = [ard[0], aw[1], aw[2], aw[3]]
    for n in range(4): a(f"ds_read_b128 {U[4*n:][:4]}, {rdv[n]} offset:{LH + 1024*n}")
    for n in range(4): a(f"ds_read_b128 {U[16+4*n:][:4]}, {rdv[n]} offset:{LX + 1024*n}")
    ln_from_sums(a, Zs, Zq, SO[0], SO[1], vt0)
    a(f"s_add_u32 {st1}, {st0}, 4096")
    for x, sd in ((0, srdH), (1, srdO)):
        for n in range(4):
            a(f"s_waitcnt lgkmcnt({7-4*x-n})", f"buffer_store_dwordx4 {U[16*x+4*n:][:4]}, {vo}, {sd}, {[st0, st1][n//2]} offen offset:{2048*(n%2)}")
    a(f"v_lshrrev_b32 {vt0}, 2, {vl}", f"s_lshr_b32 {st2}, {st2}, 8", f"s_mov_b32 exec_lo, 1", f"s_mov_b32 exec_hi, 1",
      f"buffer_store_dwordx2 {SO}, {vt0}, {srdS}, {st2} offen")
    a("s_endpgm")
    V.reset(m0)
    a.label(f".L{NAME}_cs")
    X = V(8); vo = V()
    a(f"s_sub_u32 {st0}, s2, 256", f"s_lshl_b32 {st0}, {st0}, 10", f"v_lshlrev_b32 {vo}, 2, v0", "s_waitcnt lgkmcnt(0)")
    ws_srd(a, srdZ, p_ws, "CSP"); ws_srd(a, srdO, p_ws, "CS")
    a(f"s_mov_b32 {st1}, {st0}")
    for r in range(8):
        a(f"buffer_load_dword {X[r]}, {vo}, {srdZ}, {st1} offen")
        if r < 7: a(f"s_add_u32 {st1}, {st1}, {4608*4}")
    a("s_waitcnt vmcnt(0)")
    for d in (4, 2, 1):
        for r in range(d): a(f"v_add_f32 {X[r]}, {X[r]}, {X[r+d]}")
    a(f"buffer_store_dword {X[0]}, {vo}, {srdO}, {st0} offen")
    a.label(f".L{NAME}_done")
    a("s_endpgm")
    return a.l, V.hi, 0, S.hi
```

```python
from common import *
class Empty:
    NWG = 256; LDS = 0
    def __init__(s, n): s.NAME = f"empty{n}_kernel"
    def build(s): return ["s_endpgm"], 8, 0, 8
class Perturb:
    LDS = 0
    def __init__(s, mode, val, idx=12345):
        s.NAME = "perturb_kernel"; s.mode, s.val, s.idx = mode, val, idx
        s.NWG = 1 if mode == "one" else 4096
    def build(s):
        a = Asm()
        a(f"s_cmp_ge_u32 s2, {s.NWG}", "s_cbranch_scc1 .Lp_done")
        load_arg(a, R("s", 4, 2), "out")
        a("s_waitcnt lgkmcnt(0)")
        srd(a, R("s", 8, 4), R("s", 4, 2), ASZ["out"])
        if s.mode == "one":
            a(f"v_mov_b32 v1, {s.idx*4}", "buffer_load_dword v2, v1, s[8:11], 0 offen", "s_waitcnt vmcnt(0)",
              "v_and_b32 v3, 0xffff0000, v2", "v_lshlrev_b32 v4, 16, v2", f"v_add_f32 v4, {hex(f2u(s.val))}, v4", "v_cvt_pk_bf16_f32 v2, v4, v3",
              "buffer_store_dword v2, v1, s[8:11], 0 offen")
        else:
            a("s_lshl_b32 s3, s2, 8", "v_add_u32 v1, s3, v0", "v_lshlrev_b32 v1, 2, v1", "buffer_load_dword v2, v1, s[8:11], 0 offen", "s_waitcnt vmcnt(0)",
              "v_and_b32 v3, 0xffff0000, v2", "v_lshlrev_b32 v4, 16, v2")
            if s.mode == "scale": a(f"v_mul_f32 v4, {hex(f2u(1+s.val))}, v4", f"v_mul_f32 v3, {hex(f2u(1+s.val))}, v3")
            else: a(f"v_add_f32 v4, {hex(f2u(s.val))}, v4", f"v_add_f32 v3, {hex(f2u(s.val))}, v3")
            a("v_cvt_pk_bf16_f32 v2, v4, v3", "buffer_store_dword v2, v1, s[8:11], 0 offen")
        a.label(".Lp_done"); a("s_endpgm")
        return a.l, 8, 0, 16
if __name__ == "__main__":
    import main, k1, k2, k3, gemm
    base = [k1, k2, k3, gemm.G1, gemm.G2, gemm.G3, gemm.G4]
    main.make(base + [Empty(i) for i in range(7)], "p_empty7.s")
    main.make(base + [Perturb("one", 0.1)], "p_one01.s")
    main.make(base + [Perturb("one", 0.3)], "p_one03.s")
    main.make(base + [Perturb("one", 1.0)], "p_one10.s")
    main.make(base + [Perturb("scale", 0.01)], "p_sc01.s")
    main.make(base + [Perturb("scale", 0.02)], "p_sc02.s")
```
